```python
import torch

def _softmax(x, axis=-1):
    return torch.softmax(x, dim=axis)
def _gelu(x):
    return torch.nn.functional.gelu(x, approximate="tanh")
def _silu(x):
    return torch.nn.functional.silu(x)
def _sigmoid(x):
    return torch.sigmoid(x)
def _layernorm(x, axis=-1, eps=1e-5):
    m = x.mean(dim=axis, keepdim=True)
    v = x.var(dim=axis, keepdim=True, unbiased=False)
    return (x - m) / torch.sqrt(v + eps)
def _scatter_add(tgt, idx, src, axis=0):
    return tgt.clone().index_add_(axis, idx, src)
def _segment_sum(src, seg, n):
    out = torch.zeros((n,) + src.shape[1:], dtype=src.dtype)
    return out.index_add_(0, seg, src)
def _pad(x, pw):
    flat = tuple(v for pair in reversed(pw) for v in pair)
    return torch.nn.functional.pad(x, flat)

kernel_name = 'interleave_layers__sliding_local_dilated__geglu_ffn__prompt'

def setup_inputs():

    _w = (lambda a: (lambda t: t.to(torch.bfloat16) if t.is_floating_point() else t)(torch.as_tensor(a)))
    def _A_setup():
        B, S, D = 1, 2048, 512
        return {
            "x": _w((lambda *s: torch.randn(*s, dtype=torch.bfloat16) * 0.05)(B, S, D)),
            "wqkv": _w((lambda *s: torch.randn(*s, dtype=torch.bfloat16) * 0.05)(D, 3 * D)),
            "wo": _w((lambda *s: torch.randn(*s, dtype=torch.bfloat16) * 0.05)(D, D)),
        }
    _A_in = _A_setup()

    def _B_setup():
        B, S, D, F = 1, 2048, 512, 1792
        return {
            "x": _w((lambda *s: torch.randn(*s, dtype=torch.bfloat16) * 0.05)(B, S, D)),
            "w_gate": _w((lambda *s: torch.randn(*s, dtype=torch.bfloat16) * 0.05)(D, F)),
            "w_up": _w((lambda *s: torch.randn(*s, dtype=torch.bfloat16) * 0.05)(D, F)),
            "w_down": _w((lambda *s: torch.randn(*s, dtype=torch.bfloat16) * 0.05)(F, D)),
        }
    _B_in = _B_setup()

    return {
        "A_x": _A_in["x"],
        "A_wqkv": _A_in["wqkv"],
        "A_wo": _A_in["wo"],
        "B_x": _B_in["x"],
        "B_w_gate": _B_in["w_gate"],
        "B_w_up": _B_in["w_up"],
        "B_w_down": _B_in["w_down"],
    }

def reference(A_x, A_wqkv, A_wo, B_x, B_w_gate, B_w_up, B_w_down):
    def _A_ref(x, wqkv, wo):
        B, S, D = x.shape
        H = 32; Dh = D // H
        W, dil = 8, 2
        qkv = (lambda x, *d: x.permute(*d))((x @ wqkv).reshape(B, S, 3, H, Dh), 2, 0, 3, 1, 4)
        q, k, v = qkv[0], qkv[1], qkv[2]
        scale = Dh ** -0.5
        pos = torch.arange(S)
        off = torch.arange(W) * dil
        idx = pos[:, None] - off[None, :]
        mask = idx >= 0
        idx_c = torch.where(mask, idx, 0).reshape(-1)
        kg = k[:, :, idx_c, :].reshape(B, H, S, W, Dh)
        vg = v[:, :, idx_c, :].reshape(B, H, S, W, Dh)
        logits = torch.einsum("bhsd,bhswd->bhsw", q, kg) * scale
        logits = torch.where(mask[None, None, :, :], logits, -1e9)
        attn = _softmax(logits, axis=-1)
        o = torch.einsum("bhsw,bhswd->bhsd", attn, vg)
        return (lambda x, *d: x.permute(*d))(o, 0, 2, 1, 3).reshape(B, S, D) @ wo

    def _B_ref(x, w_gate, w_up, w_down):
        return (_gelu(x @ w_gate) * (x @ w_up)) @ w_down

    x = A_x
    x = x + _A_ref(_layernorm(x, axis=-1), A_wqkv, A_wo)
    x = x + _B_ref(_layernorm(x, axis=-1), B_w_gate, B_w_up, B_w_down)
    x = x + _A_ref(_layernorm(x, axis=-1), A_wqkv, A_wo)
    x = x + _B_ref(_layernorm(x, axis=-1), B_w_gate, B_w_up, B_w_down)
    return x
```

```python
import re

REG_RE = re.compile(r'^(-|\|)?([vas])(\d+)\|?$')
RANGE_RE = re.compile(r'^(-)?([vas])\[(\d+):(\d+)\]$')

def parse_operand(op):
    op = op.strip()
    if op.startswith('abs(') and op.endswith(')'):
        op = op[4:-1]
    if op.startswith('-abs(') and op.endswith(')'):
        op = op[5:-1]
    m = REG_RE.match(op)
    if m:
        return [(m.group(2), int(m.group(3)))]
    m = RANGE_RE.match(op)
    if m:
        return [(m.group(2), k) for k in range(int(m.group(3)), int(m.group(4)) + 1)]
    if op == 'vcc':
        return [('s', 'vcc')]
    if op in ('vcc_lo', 'vcc_hi'):
        return [('s', 'vcc')]
    if op in ('exec', 'exec_lo', 'exec_hi'):
        return [('s', 'exec')]
    if op == 'm0':
        return [('s', 'm0')]
    return []

TRANS = ('v_exp_f32', 'v_log_f32', 'v_rcp_f32', 'v_rsq_f32', 'v_sqrt_f32', 'v_sin_f32', 'v_cos_f32', 'v_rcp_iflag_f32')

class Inst:
    __slots__ = ('text', 'mn', 'kind', 'rd', 'wr', 'tag', 'srcC', 'srcAB', 'dpp_rd', 'wide_store', 'data', 'nop', 'raw', 'lds_dma')
    def __init__(self, text, tag=None, raw=False):
        self.text = text
        self.tag = tag
        self.raw = raw
        self.rd = set(); self.wr = set(); self.srcC = set(); self.srcAB = set(); self.dpp_rd = set()
        self.wide_store = False; self.data = set(); self.nop = 0; self.lds_dma = False
        t = text.split(';')[0].strip()
        if not t or t.endswith(':') or t.startswith('.'):
            self.mn = ''; self.kind = 'label' if t.endswith(':') else 'dir'
            return
        parts = t.split(None, 1)
        mn = parts[0]; self.mn = mn
        rest = parts[1] if len(parts) > 1 else ''
        ops = []; depth = 0; cur = ''
        for ch in rest:
            if ch in '[(': depth += 1
            if ch in '])': depth -= 1
            if ch == ',' and depth == 0:
                ops.append(cur); cur = ''
            else:
                cur += ch
        ops.append(cur)
        mods = ''
        if ops:
            last = ops[-1].strip().split(None, 1)
            if last:
                ops[-1] = last[0]
                mods = last[1] if len(last) > 1 else ''
        P = [parse_operand(o) for o in ops]
        base = mn
        for sfx in ('_e32', '_e64', '_dpp', '_sdwa'):
            if base.endswith(sfx): base = base[:-len(sfx)]
        def R(k):
            return set(P[k]) if k < len(P) else set()
        allsrc = lambda k0: set(x for k in range(k0, len(P)) for x in P[k])
        if mn.startswith('v_mfma'):
            self.kind = 'mfma'
            self.wr = R(0); self.srcAB = R(1) | R(2); self.srcC = R(3); self.rd = self.srcAB | self.srcC
        elif mn.startswith('ds_'):
            self.kind = 'ds'
            if mn.startswith('ds_read') or mn.startswith('ds_bpermute') or mn.startswith('ds_swizzle'):
                self.wr = R(0); self.rd = allsrc(1)
            else:
                self.rd = allsrc(0); self.data = allsrc(1)
        elif mn.startswith('buffer_') or mn.startswith('global_'):
            self.kind = 'vmem'
            if mn in ('buffer_wbl2', 'buffer_inv'):
                pass
            elif 'load' in mn:
                if re.search(r'\blds\b', mods) or '_lds_' in mn:
                    self.rd = allsrc(0) | {('s', 'm0')}; self.lds_dma = True
                else:
                    self.wr = R(0); self.rd = allsrc(1)
            else:
                self.rd = allsrc(0)
                self.data = R(0) if mn.startswith('buffer_') else R(1)
                self.wide_store = mn.endswith('x4') or mn.endswith('x3')
        elif mn.startswith('v_'):
            self.kind = 'trans' if base in TRANS else 'valu'
            if base.startswith('v_permlane') and 'swap' in base:
                self.wr = R(0) | R(1); self.rd = R(0) | R(1); self.kind = 'perm'
            elif base.startswith('v_cmp'):
                self.wr = R(0); self.rd = allsrc(1)
            elif base in ('v_fmac_f32', 'v_dot2c_f32_bf16', 'v_writelane_b32'):
                self.wr = R(0); self.rd = allsrc(0)
            elif base in ('v_add_co_u32', 'v_sub_co_u32', 'v_addc_co_u32'):
                self.wr = R(0) | R(1); self.rd = allsrc(2)
            else:
                self.wr = R(0); self.rd = allsrc(1)
                if base == 'v_cndmask_b32' and len(P) == 3:
                    self.rd |= {('s', 'vcc')}
            if mn.endswith('_dpp'):
                self.dpp_rd = R(1); self.rd |= R(0)
            if base in ('v_readfirstlane_b32', 'v_readlane_b32'):
                self.kind = 'rdlane'
        elif mn.startswith('s_'):
            self.kind = 'salu'
            if mn == 's_nop':
                self.nop = int(ops[0], 0)
            elif mn.startswith('s_cmp') or mn.startswith('s_cbranch') or mn in ('s_branch', 's_barrier', 's_waitcnt', 's_sleep', 's_setprio', 's_endpgm'):
                self.rd = allsrc(0)
                if mn.startswith('s_cbranch_vcc'): self.rd |= {('s', 'vcc')}
            elif mn.startswith('s_load') or mn == 's_memtime' or mn == 's_memrealtime':
                self.kind = 'smem'; self.wr = R(0); self.rd = allsrc(1)
            else:
                self.wr = R(0); self.rd = allsrc(1)
        else:
            raise ValueError('unknown instruction: ' + text)

    @property
    def is_valu(self):
        return self.kind in ('valu', 'trans', 'perm', 'rdlane')

def vregs(s):
    return {x for x in s if x[0] in 'va'}
def sregs(s):
    return {x for x in s if x[0] == 's'}

class Wait:
    def __init__(self, vm=None, lgkm=None):
        self.vm = vm; self.lgkm = lgkm

def insert_waits(stream):
    out = []
    vmq = []
    lq = []
    def need(q, pred):
        idx = -1
        for k, e in enumerate(q):
            if pred(e): idx = k
        return idx
    def emit_wait(vi, li):
        parts = []
        if vi >= 0:
            n = min(len(vmq) - 1 - vi, 63); parts.append('vmcnt(%d)' % n); del vmq[:len(vmq) - n]
        if li >= 0:
            n = min(len(lq) - 1 - li, 15); parts.append('lgkmcnt(%d)' % n); del lq[:len(lq) - n]
        if parts:
            out.append(Inst('s_waitcnt ' + ' '.join(parts)))
    for ins in stream:
        if isinstance(ins, Wait):
            def mk(t):
                if t is None: return lambda e: False
                if t == 'all': return lambda e: True
                tt = set(t) if isinstance(t, (list, tuple, set)) else {t}
                return lambda e: e[1] in tt
            emit_wait(need(vmq, mk(ins.vm)), need(lq, mk(ins.lgkm)))
            continue
        if ins.raw:
            out.append(ins); continue
        if ins.kind in ('label', 'dir'):
            out.append(ins); continue
        if ins.mn == 's_waitcnt':
            m = re.search(r'vmcnt\((\d+)\)', ins.text)
            if m:
                n = int(m.group(1));
                if len(vmq) > n: del vmq[:len(vmq) - n]
            m = re.search(r'lgkmcnt\((\d+)\)', ins.text)
            if m:
                n = int(m.group(1))
                if len(lq) > n: del lq[:len(lq) - n]
            out.append(ins); continue
        touched = vregs(ins.rd | ins.wr)
        if touched:
            emit_wait(need(vmq, lambda e: e[0] & touched), need(lq, lambda e: e[0] & touched))
        out.append(ins)
        if ins.kind == 'vmem':
            vmq.append((vregs(ins.wr), ins.tag))
            assert len(vmq) <= 63, 'too many outstanding vmem ops at: ' + ins.text
        elif ins.kind == 'ds':
            lq.append((vregs(ins.wr), ins.tag))
            if len(lq) > 15:
                pass
        elif ins.kind == 'smem':
            raise ValueError('smem must be emitted raw with its own wait: ' + ins.text)
    return out

def required_gap(p, c):
    g = 0
    pw = vregs(p.wr)
    if p.kind == 'mfma':
        if c.kind == 'mfma':
            if pw & c.srcAB: g = max(g, 8)
            if pw & c.srcC:
                same = (p.wr == c.srcC) and (p.mn == c.mn)
                if not same: g = max(g, 6)
            if (pw & c.wr) and not (p.wr == c.srcC and p.mn == c.mn):
                g = max(g, 6)
        elif c.is_valu or c.kind in ('ds', 'vmem'):
            if pw & (vregs(c.rd) | vregs(c.wr)): g = max(g, 8)
        if (c.is_valu or c.kind in ('ds', 'vmem')) and (vregs(p.srcC) & vregs(c.wr)): g = max(g, 3)
    elif p.is_valu:
        if c.kind == 'mfma' and (pw & c.rd): g = max(g, 2)
        if c.kind == 'perm' and (pw & c.rd): g = max(g, 2)
        if c.dpp_rd and (pw & c.dpp_rd): g = max(g, 2)
        if c.kind == 'rdlane' and (pw & c.rd): g = max(g, 1)
        if p.kind == 'trans' and c.is_valu and c.kind != 'trans' and (pw & c.rd): g = max(g, 1)
        if p.kind == 'trans' and c.kind in ('ds', 'vmem') and (pw & c.rd): g = max(g, 1)
        if p.mn.endswith('_sdwa') and c.is_valu and (pw & (c.rd | c.wr)): g = max(g, 1)
        ps = sregs(p.wr)
        if ps:
            if c.is_valu and (ps & c.rd): g = max(g, 4 if c.mn.startswith('v_writelane') or c.mn.startswith('v_readlane') else 2)
            if c.kind == 'vmem' and (ps & c.rd): g = max(g, 5)
            if c.kind == 'salu' and (ps & c.rd): g = max(g, 1)
    elif p.kind == 'salu':
        if ('s', 'm0') in p.wr and c.lds_dma: g = max(g, 1)
    if p.kind == 'vmem' and p.wide_store and (c.is_valu or c.kind in ('mfma', 'ds', 'vmem')) and (p.data & vregs(c.wr)):
        g = max(g, 2)
    if p.kind == 'ds' and p.data and (c.is_valu or c.kind == 'mfma') and (vregs(p.data) & vregs(c.wr)):
        g = max(g, 2)
    return g

def insert_nops(stream):
    out = []
    hist = []
    pos = 0
    for ins in stream:
        if ins.kind in ('label', 'dir'):
            out.append(ins); continue
        needp = 0
        for (p, pp) in hist:
            gq = required_gap(p, ins)
            if gq:
                have = pos - pp - 1
                needp = max(needp, gq - have)
        if needp > 0:
            n = Inst('s_nop %d' % (needp - 1)); out.append(n); pos += needp
        out.append(ins)
        hist.append((ins, pos))
        pos += 1 + ins.nop
        while hist and pos - hist[0][1] > 12:
            hist.pop(0)
    return out

class Alloc:
    def __init__(self, kind, lo, hi):
        self.kind = kind; self.lo = lo; self.hi = hi; self.cur = lo
    def get(self, n=1, align=None):
        al = align or (2 if n > 1 else 1)
        self.cur = (self.cur + al - 1) // al * al
        r = self.cur; self.cur += n
        assert self.cur <= self.hi, 'out of %s registers (%d > %d)' % (self.kind, self.cur, self.hi)
        return Reg(self.kind, r, n)

class Reg:
    def __init__(self, kind, idx, n=1):
        self.kind = kind; self.idx = idx; self.n = n
    def __str__(self):
        return '%s%d' % (self.kind, self.idx) if self.n == 1 else '%s[%d:%d]' % (self.kind, self.idx, self.idx + self.n - 1)
    __repr__ = __str__
    def __getitem__(self, k):
        if isinstance(k, slice):
            a = k.start or 0; b = k.stop if k.stop is not None else self.n
            assert 0 <= a < b <= self.n, (a, b, self.n)
            return Reg(self.kind, self.idx + a, b - a)
        assert 0 <= k < self.n, (k, self.n)
        return Reg(self.kind, self.idx + k, 1)
    def sub(self, a, n):
        return self[a:a + n]
```

```python
import sys, struct
from asmlib import *

KNAME = 'interleave_layers__sliding_local_dilated__geglu_ffn__prompt_kernel'
STAMPS = '--stamps' in sys.argv
FORCE_SLOW = '--slow' in sys.argv

W1P = 0x0; W2P = 0x180000; W4P = 0x200000
X1 = 0x400000; X2 = 0x600000; XH_REL = 0x200000
ST0 = 0x840000; ST1 = 0x860000; ST2 = 0x880000; STH = 0x8A0000
CS3 = 0x8B0000; FL = 0x8D0000; STAMP = 0x900000
HB = 0xA00000; WS_END = 0x1100000
HT = 57344
OOB = 0x2000000
FK_X, FK_O, FK_X1, FK_H, FK_HALO = 0, 1, 2, 3, 4
LW3 = 0; SC = 114688; LDS_TOTAL = 163840

def f32(x): return '0x%08x' % struct.unpack('<I', struct.pack('<f', x))[0]

S = []
COLD = []
def e(t, tag=None): S.append(Inst(t, tag))
def raw(t): S.append(Inst(t, raw=True))
def wait(vm=None, lgkm=None): S.append(Wait(vm, lgkm))
_lab = [0]
def newlabel(p):
    _lab[0] += 1; return '.L%s_%d' % (p, _lab[0])

SRD_WS = 's[4:7]'; SRD_TOK = 's[8:11]'; SRD_DST = 's[12:15]'; SRD_A = 's[16:19]'; SRD_B = 's[20:23]'; SRD_DBG = 's[24:27]'
P_X, P_QKV, P_WO, P_BX, P_G, P_U, P_D, P_OUT, P_DBG, P_WS = [28 + 2 * k for k in range(10)]
sa = Alloc('s', 48, 100)
sW = sa.get(); sGrp = sa.get(); sMem = sa.get(); sRb = sa.get(); sC = sa.get()
sSlow = sa.get(); sLayer = sa.get(); sSpin = sa.get()
sTokBase = sa.get(); sTokHalo = sa.get(); sStatBase = sa.get(); sStatHalo = sa.get()
sFlg = sa.get()
sFlgHalo = sa.get()
sRbT = sa.get()
sWT = sa.get()
sFirst = sa.get()
sL4 = sa.get(); sL2 = sa.get()
sT = [sa.get() for _ in range(10)]
sStamp = sa.get(2)
sM = sa.get(2)

W1 = Reg('a', 0, 192)
PV = Alloc('v', 0, 256)
vTid = PV.get()
vLane = PV.get()
vL16 = PV.get()
vPoll = PV.get()
vStampV = PV.get()
vTmpF = PV.get()
RES = PV.get(8)
CS1 = PV.get(12)
PBASE = PV.cur

_st = [0]
STAMP_NAMES = []
def stamp(name):
    if not STAMPS: return
    idx = _st[0]; _st[0] += 1
    STAMP_NAMES.append(name)
    assert idx < 32
    wait(lgkm='all')
    raw('s_memtime %s' % sStamp)
    raw('s_waitcnt lgkmcnt(0)')
    e('s_lshl_b32 %s, %s, 5' % (sStamp[1], sLayer))
    e('s_add_u32 %s, %s, %d' % (sStamp[1], sStamp[1], idx))
    e('s_mov_b32 m0, %s' % sStamp[1])
    e('v_writelane_b32 %s, %s, m0' % (vStampV, sStamp[0]))

def srd(dst, ptr, size, add=0):
    d = int(dst[2:].split(':')[0])
    if add:
        e('s_add_u32 s%d, s%d, 0x%x' % (d, ptr, add))
        e('s_addc_u32 s%d, s%d, 0' % (d + 1, ptr + 1))
        e('s_and_b32 s%d, s%d, 0xffff' % (d + 1, d + 1))
    else:
        e('s_mov_b32 s%d, s%d' % (d, ptr))
        e('s_and_b32 s%d, s%d, 0xffff' % (d + 1, ptr + 1))
    e('s_mov_b32 s%d, 0x%x' % (d + 2, size))
    e('s_mov_b32 s%d, 0x20000' % (d + 3))

def mfma32(d, a, b, c): e('v_mfma_f32_16x16x32_bf16 %s, %s, %s, %s' % (d, a, b, c))
def mfma16(d, a, b, c): e('v_mfma_f32_16x16x16_bf16 %s, %s, %s, %s' % (d, a, b, c))
def cvt(d, a, b): e('v_cvt_pk_bf16_f32 %s, %s, %s' % (d, a, b))

SPIN_MAX = 1000000
def poll_issue(voff, soff):
    e('buffer_load_dword %s, %s, %s, %s offen sc1' % (vPoll, voff, SRD_WS, soff))
def poll_check(voff, soff, sneed):
    slow = newlabel('ps'); back = newlabel('pb'); inv = newlabel('pi'); back2 = newlabel('pj')
    e('v_cmp_le_u32 vcc, %s, %s' % (sneed, vPoll))
    e('s_cmp_eq_u64 vcc, -1')
    e('s_cbranch_scc0 %s' % slow)
    S.append(Inst(back + ':'))
    C = COLD
    C.append(slow + ':')
    C.append('s_sleep 1')
    C.append('buffer_load_dword %s, %s, %s, %s offen sc1' % (vPoll, voff, SRD_WS, soff))
    C.append('s_add_u32 %s, %s, 1' % (sSpin, sSpin))
    C.append('s_cmp_gt_u32 %s, %d' % (sSpin, SPIN_MAX))
    C.append('s_cbranch_scc1 .Lend')
    C.append('s_waitcnt vmcnt(0)')
    C.append('v_cmp_le_u32 vcc, %s, %s' % (sneed, vPoll))
    C.append('s_nop 1')
    C.append('s_cmp_eq_u64 vcc, -1')
    C.append('s_cbranch_scc0 %s' % slow)
    C.append('s_branch %s' % back)
def poll(voff, soff, sneed):
    poll_issue(voff, soff); poll_check(voff, soff, sneed)

def publish(tags, voff, soff, sval, always_sc1=False):
    e('v_mov_b32 %s, %s' % (vTmpF, sval))
    wait(vm=tags)
    if always_sc1:
        e('buffer_store_dword %s, %s, %s, %s offen sc1' % (vTmpF, voff, SRD_WS, soff))
        return
    slow = newlabel('us'); back = newlabel('ub')
    e('s_cmp_lg_u32 %s, 0' % sSlow)
    e('s_cbranch_scc1 %s' % slow)
    e('buffer_store_dword %s, %s, %s, %s offen' % (vTmpF, voff, SRD_WS, soff))
    S.append(Inst(back + ':'))
    C = COLD
    C.append(slow + ':')
    C.append('buffer_wbl2 sc1')
    C.append('s_waitcnt vmcnt(0)')
    C.append('buffer_store_dword %s, %s, %s, %s offen sc1' % (vTmpF, voff, SRD_WS, soff))
    C.append('s_branch %s' % back)

def barrier():
    e('s_barrier')

def load_frags(dsts, sbase, stmp, tag=None, nostep=False):
    for k, d in enumerate(dsts):
        if k % 4 == 0:
            e('s_add_u32 %s, %s, %d' % (stmp, sbase, k * 1024))
        e('buffer_load_dwordx4 %s, %s, %s, %s offen offset:%d sc1' % (d, vL16, SRD_WS, stmp, (k % 4) * 1024), tag)

def row_stats(x4, s, q):
    e('v_add_f32 %s, %s, %s' % (s, x4[0], x4[1]))
    e('v_mul_f32 %s, %s, %s' % (q, x4[0], x4[0]))
    e('v_add_f32 %s, %s, %s' % (s, s, x4[2]))
    e('v_fmac_f32 %s, %s, %s' % (q, x4[1], x4[1]))
    e('v_add_f32 %s, %s, %s' % (s, s, x4[3]))
    e('v_fmac_f32 %s, %s, %s' % (q, x4[2], x4[2]))
    e('v_fmac_f32 %s, %s, %s' % (q, x4[3], x4[3]))
    for r in (8, 4, 2, 1):
        e('v_add_f32_dpp %s, %s, %s row_ror:%d row_mask:0xf bank_mask:0xf' % (s, s, s, r))
        e('v_add_f32_dpp %s, %s, %s row_ror:%d row_mask:0xf bank_mask:0xf' % (q, q, q, r))

def unpack4(dst4, src2):
    e('v_lshlrev_b32 %s, 16, %s' % (dst4[0], src2[0]))
    e('v_and_b32 %s, 0xffff0000, %s' % (dst4[1], src2[0]))
    e('v_lshlrev_b32 %s, 16, %s' % (dst4[2], src2[1]))
    e('v_and_b32 %s, 0xffff0000, %s' % (dst4[3], src2[1]))

def finish_stats(raw4, nmean, var, t):
    e('v_add_f32 %s, %s, %s' % (nmean, raw4[0], raw4[2]))
    e('v_add_f32 %s, %s, %s' % (var, raw4[1], raw4[3]))
    e('v_permlane32_swap_b32 %s, %s' % (nmean, var))
    e('v_add_f32 %s, %s, %s' % (nmean, nmean, var))
    e('v_mov_b32 %s, %s' % (t, nmean))
    e('v_permlane16_swap_b32 %s, %s' % (nmean, t))
    e('v_add_f32 %s, %s, %s' % (nmean, nmean, t))
    e('v_mov_b32 %s, %s' % (var, nmean))
    e('v_permlane32_swap_b32 %s, %s' % (nmean, var))
    e('v_mul_f32 %s, %s, %s' % (nmean, f32(-1.0 / 512), nmean))
    e('v_mul_f32 %s, %s, %s' % (t, nmean, nmean))
    e('v_fma_f32 %s, %s, %s, -%s' % (var, var, sT[9], t))
    e('v_max_f32 %s, 0, %s' % (var, var))
    e('v_add_f32 %s, %s, %s' % (var, f32(1e-5), var))

def prologue():
    e('s_cmp_ge_u32 s2, 256')
    e('s_cbranch_scc1 .Lend')
    raw('s_load_dwordx16 s[28:43], s[0:1], 0')
    raw('s_load_dwordx4 s[44:47], s[0:1], 64')
    e('v_and_b32 %s, 63, v0' % vLane)
    e('v_lshrrev_b32 %s, 6, v0' % vPoll)
    e('v_lshlrev_b32 %s, 4, %s' % (vL16, vLane))
    e('v_readfirstlane_b32 %s, %s' % (sW, vPoll))
    e('v_mov_b32 %s, 0' % vStampV)
    e('s_and_b32 %s, s2, 7' % sGrp)
    e('s_lshr_b32 %s, s2, 3' % sMem)
    e('s_lshr_b32 %s, %s, 3' % (sRb, sMem))
    e('s_and_b32 %s, %s, 7' % (sC, sMem))
    e('s_mov_b32 %s, 0' % sLayer)
    e('s_mov_b32 %s, 0' % sSpin)
    e('s_mov_b32 %s, 0' % sL4)
    e('s_mov_b32 %s, 0' % sL2)
    e('s_mov_b32 %s, %s' % (sT[9], f32(1.0 / 512)))
    e('s_lshl_b32 %s, %s, 2' % (sT[0], sGrp))
    e('s_add_u32 %s, %s, %s' % (sRbT, sT[0], sRb))
    e('s_lshl_b32 %s, %s, 2' % (sRbT, sRbT))
    e('s_add_u32 %s, %s, %s' % (sWT, sT[0], sW))
    e('s_lshl_b32 %s, %s, 2' % (sWT, sWT))
    e('s_lshl_b32 %s, %s, 12' % (sFlg, sGrp))
    e('s_add_u32 %s, %s, 0x%x' % (sFlg, sFlg, FL))
    e('s_and_b32 %s, %s, 3' % (sT[0], sGrp))
    e('s_lshl_b32 %s, %s, 2' % (sT[0], sT[0]))
    e('s_add_u32 %s, %s, %s' % (sT[0], sT[0], sRb))
    e('s_cmp_eq_u32 %s, 0' % sT[0])
    e('s_cselect_b32 %s, 1, 0' % sFirst)
    e('s_lshl_b32 %s, %s, 17' % (sTokBase, sT[0]))
    e('s_lshr_b32 %s, %s, 2' % (sT[1], sGrp))
    e('s_lshl_b32 %s, %s, 10' % (sT[1], sT[1]))
    e('s_add_u32 %s, %s, %s' % (sTokBase, sTokBase, sT[1]))
    e('s_sub_u32 %s, %s, 32768' % (sTokHalo, sTokBase))
    e('s_lshl_b32 %s, %s, 10' % (sStatBase, sRbT))
    e('s_add_u32 %s, %s, 0x%x' % (sStatBase, sStatBase, ST0))
    e('s_sub_u32 %s, %s, 1024' % (sStatHalo, sStatBase))
    e('s_cmp_eq_u32 %s, 1' % sFirst)
    e('s_cselect_b32 %s, %s, %s' % (sTokHalo, sTokBase, sTokHalo))
    e('s_cselect_b32 %s, %s, %s' % (sStatHalo, sStatBase, sStatHalo))
    e('s_mov_b32 %s, %s' % (sFlgHalo, sFlg))
    raw('s_waitcnt lgkmcnt(0)')
    srd(SRD_WS, P_WS, WS_END)
    srd(SRD_TOK, P_X, 0x200000)
    srd(SRD_DST, P_WS, 0x200000, add=X2)
    srd(SRD_DBG, P_DBG, 256)
    stamp('start')
    V = Alloc('v', PBASE, 256)
    vc = V.get(); vcd = V.get()
    e('s_getpc_b64 %s' % sM)
    S.append(Inst('.Lpc0:'))
    e('s_sub_u32 %s, %s, .Lpc0-%s' % (sM[0], sM[0], KNAME))
    e('s_subb_u32 %s, %s, 0' % (sM[1], sM[1]))
    e('v_lshlrev_b32 %s, 7, v0' % vc)
    e('v_min_u32 %s, .Lcode_end-%s-4, %s' % (vcd, KNAME, vc))
    tA = V.get(); tB = V.get()
    e('global_load_dword %s, %s, %s' % (tA, vcd, sM), 'warm')
    e('v_add_u32 %s, 32768, %s' % (vc, vc))
    e('v_min_u32 %s, .Lcode_end-%s-4, %s' % (vcd, KNAME, vc))
    e('global_load_dword %s, %s, %s' % (tB, vcd, sM), 'warm')
    su, sks, scb, sstr, ssrc, sdst, sdft = sT[0], sT[1], sT[2], sT[3], sT[4], sT[5], sT[6]
    e('s_lshl_b32 %s, s2, 2' % su)
    e('s_add_u32 %s, %s, %s' % (su, su, sW))
    e('s_and_b32 %s, %s, 7' % (scb, su))
    l2 = newlabel('u2'); l4 = newlabel('u4'); lj = newlabel('uj')
    e('s_cmp_ge_u32 %s, 384' % su)
    e('s_cbranch_scc1 %s' % l2)
    srd(SRD_A, P_QKV, 512 * 3072)
    e('s_lshr_b32 %s, %s, 7' % (sT[7], su))
    e('s_lshr_b32 %s, %s, 3' % (sks, su))
    e('s_and_b32 %s, %s, 15' % (sks, sks))
    e('s_mov_b32 %s, 3072' % sstr)
    e('s_mul_i32 %s, %s, %d' % (ssrc, sks, 32 * 3072))
    e('s_lshl_b32 %s, %s, 10' % (sT[8], sT[7]))
    e('s_add_u32 %s, %s, %s' % (ssrc, ssrc, sT[8]))
    e('s_mul_i32 %s, %s, 12' % (sdst, scb))
    e('s_add_u32 %s, %s, %s' % (sdst, sdst, sT[7]))
    e('s_lshl_b32 %s, %s, 4' % (sdst, sdst))
    e('s_add_u32 %s, %s, %s' % (sdst, sdst, sks))
    e('s_lshl_b32 %s, %s, 10' % (sdst, sdst))
    e('s_mov_b32 %s, %d' % (sdft, 48 * 1024))
    e('s_branch %s' % lj)
    S.append(Inst(l2 + ':'))
    e('s_cmp_ge_u32 %s, 512' % su)
    e('s_cbranch_scc1 %s' % l4)
    srd(SRD_A, P_WO, 512 * 1024)
    e('s_sub_u32 %s, %s, 384' % (sks, su))
    e('s_lshr_b32 %s, %s, 3' % (sks, sks))
    e('s_mov_b32 %s, 1024' % sstr)
    e('s_lshl_b32 %s, %s, 15' % (ssrc, sks))
    e('s_lshl_b32 %s, %s, 4' % (sdst, scb))
    e('s_add_u32 %s, %s, %s' % (sdst, sdst, sks))
    e('s_lshl_b32 %s, %s, 12' % (sdst, sdst))
    e('s_add_u32 %s, %s, 0x%x' % (sdst, sdst, W2P))
    e('s_mov_b32 %s, 1024' % sdft)
    e('s_branch %s' % lj)
    S.append(Inst(l4 + ':'))
    srd(SRD_A, P_D, 1792 * 1024)
    e('s_sub_u32 %s, %s, 512' % (sks, su))
    e('s_lshr_b32 %s, %s, 3' % (sks, sks))
    e('s_mov_b32 %s, 1024' % sstr)
    e('s_lshl_b32 %s, %s, 15' % (ssrc, sks))
    e('s_mul_i32 %s, %s, 56' % (sdst, scb))
    e('s_add_u32 %s, %s, %s' % (sdst, sdst, sks))
    e('s_lshl_b32 %s, %s, 12' % (sdst, sdst))
    e('s_add_u32 %s, %s, 0x%x' % (sdst, sdst, W4P))
    e('s_cmp_ge_u32 %s, 960' % su)
    e('s_cselect_b32 %s, 0x%x, %s' % (sdst, OOB, sdst))
    e('s_cselect_b32 %s, 0, %s' % (ssrc, ssrc))
    e('s_mov_b32 %s, 1024' % sdft)
    S.append(Inst(lj + ':'))
    e('s_lshl_b32 %s, %s, 7' % (sT[7], scb))
    e('s_add_u32 %s, %s, %s' % (ssrc, ssrc, sT[7]))
    vo0 = V.get(); vo1 = V.get(); t0 = V.get(); t1 = V.get()
    e('v_lshrrev_b32 %s, 3, %s' % (t0, vLane))
    e('v_mul_lo_u32 %s, %s, %s' % (t0, t0, sstr))
    e('v_lshrrev_b32 %s, 3, %s' % (t1, vLane))
    e('v_and_b32 %s, 2, %s' % (t1, t1))
    e('v_and_b32 %s, 7, %s' % (vo0, vLane))
    e('v_xor_b32 %s, %s, %s' % (vo0, vo0, t1))
    e('v_xor_b32 %s, 4, %s' % (vo1, vo0))
    e('v_lshl_add_u32 %s, %s, 4, %s' % (vo0, vo0, t0))
    e('v_lshl_add_u32 %s, %s, 4, %s' % (vo1, vo1, t0))
    sScr = sT[7]
    e('s_mul_i32 %s, %s, 12288' % (sScr, sW))
    e('s_add_u32 %s, %s, %d' % (sScr, sScr, SC))
    e('s_lshl_b32 %s, %s, 3' % (sstr, sstr))
    for p in range(4):
        e('s_add_u32 m0, %s, %d' % (sScr, p * 1024))
        e('buffer_load_dwordx4 %s, %s, %s offen lds' % ((vo0, vo1)[p & 1], SRD_A, ssrc), 'pack')
        if p < 3: e('s_add_u32 %s, %s, %s' % (ssrc, ssrc, sstr))
    vr = V.get()
    own_x_off(vr, t0)
    for j in range(4):
        e('s_add_u32 %s, %s, %d' % (sT[8], sTokBase, j * 32768))
        e('buffer_load_dwordx2 %s, %s, %s, %s offen' % (RES[2 * j:2 * j + 2], vr, SRD_TOK, sT[8]))
    va = V.get()
    e('v_lshrrev_b32 %s, 4, %s' % (t0, vLane))
    e('v_bfe_u32 %s, %s, 2, 2' % (t1, vLane))
    e('v_lshl_add_u32 %s, %s, 3, %s' % (va, t0, t1))
    e('v_lshlrev_b32 %s, 7, %s' % (va, va))
    e('v_and_b32 %s, 1, %s' % (t0, t0))
    e('v_lshlrev_b32 %s, 1, %s' % (t0, t0))
    e('v_lshrrev_b32 %s, 1, %s' % (t1, t1))
    e('v_or_b32 %s, %s, %s' % (t0, t0, t1))
    e('v_lshl_add_u32 %s, %s, 5, %s' % (va, t0, va))
    e('v_and_b32 %s, 3, %s' % (t0, vLane))
    e('v_lshl_add_u32 %s, %s, 3, %s' % (va, t0, va))
    e('v_add_u32 %s, %s, %s' % (va, sScr, va))
    fr = V.get(16)
    vx = V.get(4)
    for ft in range(4):
        e('v_xor_b32 %s, %d, %s' % (vx[ft], ft * 32, va))
    wait(vm='pack')
    for ft in range(4):
        e('ds_read_b64_tr_b16 %s, %s' % (fr[4 * ft:4 * ft + 2], vx[ft]))
        e('ds_read_b64_tr_b16 %s, %s offset:512' % (fr[4 * ft + 2:4 * ft + 4], vx[ft]))
    for ft in range(4):
        e('buffer_store_dwordx4 %s, %s, %s, %s offen sc1' % (fr[4 * ft:4 * ft + 4], vL16, SRD_WS, sdst), 'pub')
        if ft < 3: e('s_add_u32 %s, %s, %s' % (sdst, sdst, sdft))
    vs = V.get(); x4 = V.get(4); sq = V.get(8)
    own_stat_off(vs, t0)
    for j in range(4):
        unpack4(x4, RES[2 * j:2 * j + 2])
        row_stats(x4, sq[2 * j], sq[2 * j + 1])
        e('buffer_store_dwordx2 %s, %s, %s, %s offen offset:%d sc1' % (sq[2 * j:2 * j + 2], vs, SRD_WS, sStatBase, j * 1024), 'pub')
    vf = V.get(); vz = V.get()
    e('s_lshl_b32 %s, %s, 2' % (sT[0], sC))
    e('s_add_u32 %s, %s, %s' % (sT[0], sT[0], sW))
    e('s_lshl_b32 %s, %s, 2' % (sT[0], sT[0]))
    e('s_lshl_b32 %s, %s, 7' % (sT[1], sRb))
    e('s_add_u32 %s, %s, %s' % (sT[0], sT[0], sT[1]))
    e('s_lshl_b32 %s, %s, 7' % (sT[1], sW))
    e('s_lshl_b32 %s, %s, 2' % (sT[2], sMem))
    e('s_add_u32 %s, %s, %s' % (sT[1], sT[1], sT[2]))
    e('v_min_u32 %s, 4, %s' % (t0, vLane))
    e('v_mov_b32 %s, %s' % (vf, sT[0]))
    e('v_mov_b32 %s, %s' % (t1, sT[1]))
    e('v_cmp_eq_u32 vcc, %d, %s' % (FK_H, t0))
    e('v_cndmask_b32 %s, %s, %s, vcc' % (vf, vf, t1))
    e('v_lshl_add_u32 %s, %s, 9, %s' % (vf, t0, vf))
    e('v_mov_b32 %s, 0' % vz)
    e('buffer_store_dword %s, %s, %s, %s offen sc1' % (vz, vf, SRD_WS, sFlg), 'pub')
    srd(SRD_A, P_G, 512 * 3584)
    srd(SRD_B, P_U, 512 * 3584)
    v7 = V.get(7)
    e('s_mov_b32 %s, 9363' % sT[0])
    e('s_mov_b32 %s, 3584' % sT[1])
    for t in range(7):
        e('v_add_u32 %s, %d, %s' % (t0, 64 * t, vLane))
        e('v_mul_lo_u32 %s, %s, %s' % (t1, t0, sT[0]))
        e('v_lshrrev_b32 %s, 16, %s' % (t1, t1))
        e('v_mul_u32_u24 %s, 7, %s' % (v7[t], t1))
        e('v_sub_u32 %s, %s, %s' % (t0, t0, v7[t]))
        e('v_mul_lo_u32 %s, %s, %s' % (t1, t1, sT[1]))
        e('v_lshl_add_u32 %s, %s, 4, %s' % (v7[t], t0, t1))
    e('s_mul_i32 %s, %s, %d' % (sT[2], sW, 128 * 3584))
    e('s_mul_i32 %s, %s, 112' % (sT[3], sMem))
    e('s_add_u32 %s, %s, %s' % (sT[2], sT[2], sT[3]))
    e('s_mul_i32 %s, %s, %d' % (sT[3], sW, 28672))
    for uu in range(2):
        for half, sr in enumerate((SRD_A, SRD_B)):
            for t in range(7):
                e('s_add_u32 m0, %s, %d' % (sT[3], LW3 + uu * 14336 + half * 7168 + t * 1024))
                e('buffer_load_dwordx4 %s, %s, %s offen lds' % (v7[t], sr, sT[2]), 'w3u%d' % uu)
        if uu == 0: e('s_add_u32 %s, %s, %d' % (sT[2], sT[2], 64 * 3584))
    vt = V.get(); pt = V.get(4)
    e('v_lshlrev_b32 %s, 7, v0' % vt)
    e('s_mul_i32 %s, %s, %d' % (sT[0], sGrp, 16 * HT))
    e('s_mul_i32 %s, %s, %d' % (sT[1], sMem, 28672))
    e('s_add_u32 %s, %s, %s' % (sT[0], sT[0], sT[1]))
    e('s_add_u32 %s, %s, 0x%x' % (sT[0], sT[0], HB))
    e('v_min_u32 %s, %d, %s' % (t0, 28672 - 128, vt))
    e('buffer_load_dword %s, %s, %s, %s offen' % (pt[0], t0, SRD_WS, sT[0]), 'touch')
    e('v_lshlrev_b32 %s, 7, %s' % (t0, vLane))
    e('v_lshlrev_b32 %s, 11, %s' % (t1, vLane))
    e('s_lshl_b32 %s, %s, 5' % (sT[0], sGrp))
    e('s_add_u32 %s, %s, %s' % (sT[0], sT[0], sMem))
    e('s_lshl_b32 %s, %s, 13' % (sT[1], sT[0]))
    e('s_add_u32 %s, %s, 0x%x' % (sT[1], sT[1], X1))
    e('s_lshl_b32 %s, %s, 7' % (sT[2], sC))
    e('s_add_u32 %s, %s, %s' % (sT[2], sT[2], sTokBase))
    e('s_add_u32 %s, %s, 0x%x' % (sT[2], sT[2], X2))
    e('s_cmp_eq_u32 %s, 1' % sW)
    e('s_cselect_b32 %s, %s, %s' % (sT[1], sT[2], sT[1]))
    e('s_cselect_b64 vcc, -1, 0')
    e('v_cndmask_b32 %s, %s, %s, vcc' % (t0, t0, t1))
    e('s_lshl_b32 %s, %s, 9' % (sT[2], sT[0]))
    e('s_lshl_b32 %s, %s, 17' % (sT[3], sW))
    e('s_add_u32 %s, %s, %s' % (sT[2], sT[2], sT[3]))
    e('s_add_u32 %s, %s, 0x%x' % (sT[2], sT[2], ST1 - 2 * 0x20000))
    e('s_cmp_ge_u32 %s, 2' % sW)
    e('s_cselect_b32 %s, %s, %s' % (sT[1], sT[2], sT[1]))
    e('s_cselect_b32 %s, 384, -1' % sT[3])
    e('v_min_u32 %s, %s, %s' % (t0, sT[3], t0))
    e('buffer_load_dword %s, %s, %s, %s offen' % (pt[1], t0, SRD_WS, sT[1]), 'touch')
    wait(vm='pub')
    stamp('pub_done')
    barrier()
    e('s_getreg_b32 %s, hwreg(HW_REG_XCC_ID, 0, 4)' % sT[1])
    e('s_or_b32 %s, %s, 0x80' % (sT[1], sT[1]))
    lw = newlabel('arr'); lp = newlabel('arp')
    e('v_lshlrev_b32 %s, 2, %s' % (t1, vLane))
    e('s_cmp_lg_u32 %s, 0' % sW)
    e('s_cbranch_scc1 %s' % lw)
    raw('v_mov_b32 %s, %s' % (t0, sT[0]))
    raw('v_mov_b32 %s, %s' % (vz, sT[1]))
    raw('buffer_store_byte %s, %s, %s, 0 offen sc1' % (vz, t0, SRD_DBG))
    S.append(Inst(lp + ':'))
    raw('s_sleep 4')
    raw('buffer_load_dword %s, %s, %s, 0 offen sc1' % (vPoll, t1, SRD_DBG))
    raw('s_add_u32 %s, %s, 1' % (sSpin, sSpin))
    raw('s_cmp_gt_u32 %s, %d' % (sSpin, SPIN_MAX))
    raw('s_cbranch_scc1 .Lend')
    raw('s_waitcnt vmcnt(0)')
    raw('v_and_b32 %s, 0x80808080, %s' % (vz, vPoll))
    raw('v_cmp_eq_u32 vcc, 0x80808080, %s' % vz)
    raw('s_nop 1')
    raw('s_cmp_eq_u64 vcc, -1')
    raw('s_cbranch_scc0 %s' % lp)
    S.append(Inst(lw + ':'))
    barrier()
    stamp('arrived')
    e('buffer_load_dword %s, %s, %s, 0 offen sc1' % (vPoll, t1, SRD_DBG))
    e('s_lshl_b32 %s, %s, 2' % (sT[2], sC))
    e('s_add_u32 %s, %s, %s' % (sT[2], sT[2], sW))
    e('s_mul_i32 %s, %s, %d' % (sT[2], sT[2], 48 * 1024))
    w1f = [W1[4 * k:4 * k + 4] for k in range(48)]
    load_frags(w1f[:24], sT[2], sT[3])
    e('s_mul_i32 %s, %s, 0x01010101' % (sT[1], sT[1]))
    e('v_cmp_eq_u32 vcc, %s, %s' % (sT[1], vPoll))
    e('s_lshl_b32 %s, %s, 3' % (sT[4], sGrp))
    e('s_lshr_b64 %s, vcc, %s' % (sM, sT[4]))
    e('s_and_b32 %s, %s, 0xff' % (sM[0], sM[0]))
    e('s_cmp_lg_u32 %s, 0xff' % sM[0])
    e('s_cselect_b32 %s, 1, %d' % (sSlow, 1 if FORCE_SLOW else 0))
    e('s_add_u32 %s, %s, %d' % (sT[2], sT[2], 24 * 1024))
    load_frags(w1f[24:], sT[2], sT[3])
    ones = V.get(4)
    for k in range(4): e('v_mov_b32 %s, 0x3f803f80' % ones[k])
    aA = V.get(); aB = V.get(); aM = V.get(); aW = V.get()
    e('v_lshrrev_b32 %s, 4, %s' % (t0, vLane))
    e('v_bfe_u32 %s, %s, 2, 2' % (t1, vLane))
    e('v_lshl_add_u32 %s, %s, 3, %s' % (t0, t0, t1))
    e('v_mul_u32_u24 %s, 112, %s' % (t0, t0))
    e('s_mul_i32 %s, %s, %d' % (sT[3], sW, 28672))
    e('v_add_u32 %s, %s, %s' % (t0, sT[3], t0))
    e('v_and_b32 %s, 3, %s' % (t1, vLane))
    e('v_lshl_add_u32 %s, %s, 4, %s' % (aA, t1, t0))
    e('v_lshl_add_u32 %s, %s, 3, %s' % (aB, t1, t0))
    e('v_lshrrev_b32 %s, 1, %s' % (t1, t1))
    e('v_mul_u32_u24 %s, %d, %s' % (t1, 7168 - 16, t1))
    e('v_add_u32 %s, %s, %s' % (aM, aB, t1))
    e('v_add_u32 %s, %s, %s' % (aW, sT[3], vL16))
    F = V.get(56); C3 = V.get(28)
    tile_src = [(aA, 0), (aA, 7168), (aA, 8), (aA, 7168 + 8), (aB, 64), (aB, 7168 + 64), (aM, 96)]
    for uu in range(2):
        wait(vm='w3u%d' % uu)
        for kk in range(2):
            for tl, (ar, off) in enumerate(tile_src):
                d = F[(kk * 7 + tl) * 4:(kk * 7 + tl) * 4 + 4]
                o = LW3 + uu * 14336 + kk * 32 * 112 + off
                e('ds_read_b64_tr_b16 %s, %s offset:%d' % (d[0:2], ar, o))
                e('ds_read_b64_tr_b16 %s, %s offset:%d' % (d[2:4], ar, o + 4 * 112))
        wait(lgkm='all')
        for kk in range(2):
            for tl in range(7):
                d = F[(kk * 7 + tl) * 4:(kk * 7 + tl) * 4 + 4]
                e('ds_write_b128 %s, %s offset:%d' % (aW, d, LW3 + uu * 14336 + (kk * 7 + tl) * 1024))
                c = C3[4 * tl:4 * tl + 4]
                mfma32(c, d, ones, 0 if (uu == 0 and kk == 0) else c)
    e('s_mul_i32 %s, %s, 12288' % (sT[3], sW))
    e('s_add_u32 %s, %s, %d' % (sT[3], sT[3], SC))
    e('v_add_u32 %s, %s, %s' % (aW, sT[3], vL16))
    for tl in range(7):
        e('ds_write_b128 %s, %s offset:%d' % (aW, C3[4 * tl:4 * tl + 4], tl * 1024))
    wait(lgkm='all')
    barrier()
    e('s_lshl_b32 %s, %s, 10' % (sT[3], sW))
    e('s_add_u32 %s, %s, %d' % (sT[3], sT[3], SC))
    e('v_add_u32 %s, %s, %s' % (aW, sT[3], vL16))
    for hh in range(2):
        for src in range(4):
            e('ds_read_b128 %s, %s offset:%d' % (F[(hh * 4 + src) * 4:(hh * 4 + src) * 4 + 4], aW, src * 12288 + hh * 4096))
    e('v_lshrrev_b32 %s, 4, %s' % (t0, vLane))
    e('v_lshlrev_b32 %s, 4, %s' % (t0, t0))
    e('s_lshl_b32 %s, s2, 9' % sT[3])
    e('s_lshl_b32 %s, %s, 6' % (sT[4], sW))
    e('s_add_u32 %s, %s, %s' % (sT[3], sT[3], sT[4]))
    e('s_add_u32 %s, %s, 0x%x' % (sT[3], sT[3], CS3))
    for hh in range(2):
        b = hh * 16
        for r in range(4):
            e('v_add_f32 %s, %s, %s' % (F[b + r], F[b + r], F[b + 4 + r]))
            e('v_add_f32 %s, %s, %s' % (F[b + 8 + r], F[b + 8 + r], F[b + 12 + r]))
            e('v_add_f32 %s, %s, %s' % (F[b + r], F[b + r], F[b + 8 + r]))
        e('buffer_store_dwordx4 %s, %s, %s, %s offen offset:%d' % (F[b:b + 4], t0, SRD_WS, sT[3], hh * 256), 'cs3')
    stamp('w3prep')
    for ks in range(16):
        for sec in range(3):
            c = CS1[4 * sec:4 * sec + 4]
            mfma32(c, w1f[sec * 16 + ks], ones, 0 if ks == 0 else c)
    wait(vm='all', lgkm='all')
    barrier()
    stamp('w1done')
    e('s_nop 7')

def own_x_off(v, t):
    e('v_lshrrev_b32 %s, 4, %s' % (t, vLane))
    e('v_lshlrev_b32 %s, 11, %s' % (v, t))
    e('v_and_b32 %s, 15, %s' % (t, vLane))
    e('v_lshl_add_u32 %s, %s, 3, %s' % (v, t, v))
    e('s_lshl_b32 %s, %s, 13' % (sT[8], sW))
    e('v_add_u32 %s, %s, %s' % (v, sT[8], v))
    e('s_lshl_b32 %s, %s, 7' % (sT[8], sC))
    e('v_add_u32 %s, %s, %s' % (v, sT[8], v))

def own_stat_off(v, t):
    e('v_lshrrev_b32 %s, 4, %s' % (t, vLane))
    e('v_lshlrev_b32 %s, 4, %s' % (v, t))
    e('s_lshr_b32 %s, %s, 1' % (sT[8], sC))
    e('s_lshl_b32 %s, %s, 8' % (sT[8], sT[8]))
    e('v_add_u32 %s, %s, %s' % (v, sT[8], v))
    e('s_lshl_b32 %s, %s, 6' % (sT[8], sW))
    e('v_add_u32 %s, %s, %s' % (v, sT[8], v))
    e('s_and_b32 %s, %s, 1' % (sT[8], sC))
    e('s_lshl_b32 %s, %s, 3' % (sT[8], sT[8]))
    e('v_add_u32 %s, %s, %s' % (v, sT[8], v))

def own_flag_off(v, kind):
    e('s_lshl_b32 %s, %s, 2' % (sT[8], sC))
    e('s_add_u32 %s, %s, %s' % (sT[8], sT[8], sW))
    e('s_lshl_b32 %s, %s, 2' % (sT[8], sT[8]))
    e('s_lshl_b32 %s, %s, 7' % (sT[7], sRb))
    e('s_add_u32 %s, %s, %s' % (sT[8], sT[8], sT[7]))
    e('s_add_u32 %s, %s, %d' % (sT[8], sT[8], kind * 512))
    e('v_mov_b32 %s, %s' % (v, sT[8]))

W2 = Reg('v', 192, 64)
ORDER = [3, 2, 1, 0]

def k1():
    V = Alloc('v', PBASE, 192)
    t0 = V.get(); t1 = V.get(); t2 = V.get()
    vdma = V.get(4); vrd = V.get(4); vp32 = V.get(); vof = V.get(); vost = V.get()
    NR = 4
    ring = [V.get(4) for _ in range(NR)]
    acc = [V.get(12) for _ in range(2)]
    Qp = V.get(10); Kp = V.get(10); VT = V.get(10); SCL = V.get(5, 1)
    Sx = V.get(8); Pp = V.get(4); Oa = V.get(4); La = V.get(4); tq = V.get(4); vn = V.get(2)
    b0 = V.get(4); b1 = V.get(4); b0z = V.get(4); ident = V.get(2); ones = V.get(4)
    straw = [V.get(4) for _ in range(5)]
    nmean = V.get(); var = V.get(); rstd = V.get()
    e('v_and_b32 %s, 31, %s' % (vp32, vLane))
    e('v_lshlrev_b32 %s, 2, %s' % (vp32, vp32))
    e('s_lshl_b32 %s, %s, 7' % (sT[0], sRb))
    e('s_add_u32 %s, %s, %s' % (sT[0], sT[0], sFlg))
    sFx = sT[0]
    e('s_lshl_b32 %s, %s, 6' % (sT[1], sW))
    for k in range(4):
        e('s_add_u32 %s, %s, %d' % (sT[2], sT[1], k * 16))
        e('v_xor_b32 %s, %s, %s' % (vdma[k], sT[2], vL16))
    tiles = [3, 2, 1, 0, -1]
    slot = {3: 0, 2: 1, 1: 2, 0: 0, -1: 1}
    sidx = {-1: 0, 0: 1, 1: 2, 2: 3, 3: 4}
    def fetch(t):
        if t >= 0:
            e('s_mul_i32 %s, %s, %d' % (sT[2], sLayer, 4 - t))
            poll(vp32, sFx, sT[2])
            e('s_add_u32 %s, %s, %d' % (sT[3], sTokBase, t * 32768))
        else:
            poll(vp32, sFlgHalo, sLayer)
            e('s_mov_b32 %s, %s' % (sT[3], sTokHalo))
        e('s_lshl_b32 %s, %s, 13' % (sT[4], sW))
        e('s_add_u32 %s, %s, %s' % (sT[3], sT[3], sT[4]))
        e('s_lshl_b32 %s, %s, 12' % (sT[4], sW))
        for k in range(4):
            e('s_add_u32 m0, %s, %d' % (sT[4], SC + slot[t] * 16384 + k * 1024))
            e('buffer_load_dwordx4 %s, %s, %s offen sc1 lds' % (vdma[k], SRD_TOK, sT[3]), 'tok%d' % t)
            if k < 3: e('s_add_u32 %s, %s, 2048' % (sT[3], sT[3]))
        if t >= 0:
            e('buffer_load_dwordx4 %s, %s, %s, %s offen offset:%d sc1' % (straw[sidx[t]], vL16, SRD_WS, sStatBase, t * 1024))
        else:
            e('buffer_load_dwordx4 %s, %s, %s, %s offen sc1' % (straw[0], vL16, SRD_WS, sStatHalo))
    fetch(3); fetch(2); fetch(1)
    e('s_lshl_b32 %s, %s, 2' % (sT[5], sC))
    e('s_add_u32 %s, %s, %s' % (sT[5], sT[5], sW))
    e('s_lshl_b32 %s, %s, 14' % (sT[5], sT[5]))
    e('s_add_u32 %s, %s, 0x%x' % (sT[5], sT[5], W2P))
    load_frags([W2[4 * k:4 * k + 4] for k in range(16)], sT[5], sT[6])
    e('v_and_b32 %s, 15, %s' % (t0, vLane))
    e('v_lshrrev_b32 %s, 4, %s' % (t1, vLane))
    for s in range(4):
        e('v_add_u32 %s, %d, %s' % (t2, 4 * s, t1))
        e('v_xor_b32 %s, %s, %s' % (t2, t2, t0))
        e('v_lshlrev_b32 %s, 4, %s' % (t2, t2))
        e('v_lshl_add_u32 %s, %s, 10, %s' % (vrd[s], t0, t2))
        e('v_add_u32 %s, %d, %s' % (vrd[s], SC, vrd[s]))
    for k in range(4): e('v_mov_b32 %s, 0x3f803f80' % ones[k])
    e('v_lshlrev_b32 %s, 2, %s' % (t2, t1))
    e('v_sub_u32 %s, %s, %s' % (t2, t2, t0))
    e('v_mov_b32 %s, 0xff800000' % tq[0])
    e('v_mov_b32 %s, 0x3f80' % tq[1])
    e('v_mov_b32 %s, 0x3f800000' % tq[2])
    e('s_cmp_eq_u32 %s, 1' % sFirst)
    e('s_cselect_b64 %s, -1, 0' % sM)
    for r in range(4):
        e('v_cmp_le_i32 vcc, %d, %s' % (9 - r, t2))
        e('v_cndmask_b32 %s, %s, 0, vcc' % (b0[r], tq[0]))
        e('v_cndmask_b32 %s, %s, %s, %s' % (b0z[r], b0[r], tq[0], sM))
        e('v_add_u32 %s, %d, %s' % (tq[3], 7 + r, t2))
        e('v_cmp_gt_u32 vcc, 8, %s' % tq[3])
        e('v_cndmask_b32 %s, %s, 0, vcc' % (b1[r], tq[0]))
    for p in range(2):
        e('v_cmp_eq_i32 vcc, %d, %s' % (-2 * p, t2))
        e('v_cndmask_b32 %s, 0, %s, vcc' % (ident[p], tq[1]))
        e('v_cmp_eq_i32 vcc, %d, %s' % (-2 * p - 1, t2))
        e('v_cndmask_b32 %s, %s, %s, vcc' % (ident[p], ident[p], tq[2]))
    e('v_lshrrev_b32 %s, 1, %s' % (t2, t1))
    e('v_lshlrev_b32 %s, 8, %s' % (vost, t2))
    e('v_lshl_add_u32 %s, %s, 4, %s' % (vost, t0, vost))
    e('v_and_b32 %s, 1, %s' % (t2, t1))
    e('v_lshl_add_u32 %s, %s, 3, %s' % (vost, t2, vost))
    e('s_lshl_b32 %s, %s, 2' % (sT[5], sC))
    e('s_add_u32 %s, %s, %s' % (sT[5], sT[5], sW))
    e('s_lshl_b32 %s, %s, 9' % (sT[5], sT[5]))
    e('v_add_u32 %s, %s, %s' % (vost, sT[5], vost))
    own_flag_off(vof, FK_O)
    sO = sT[5]
    e('s_mul_i32 %s, %s, %d' % (sO, sRbT, HT))
    e('s_add_u32 %s, %s, 0x%x' % (sO, sO, HB))

    def gemm(t, a):
        wait(vm='tok%d' % t)
        barrier()
        secs = [0, 1, 2] if t >= 0 else [1, 2]
        def rd(ks):
            e('ds_read_b128 %s, %s offset:%d' % (ring[ks % NR], vrd[ks & 3], slot[t] * 16384 + (ks >> 2) * 256))
        for ks in range(NR - 1): rd(ks)
        for ks in range(16):
            if ks + NR - 1 < 16: rd(ks + NR - 1)
            for sec in secs:
                c = a[4 * sec:4 * sec + 4]
                mfma32(c, W1[(sec * 16 + ks) * 4:(sec * 16 + ks) * 4 + 4], ring[ks % NR], 0 if ks == 0 else c)
    def finalize(t, a):
        x = sidx[t]
        finish_stats(straw[x], nmean, var, t2)
        e('v_rsq_f32 %s, %s' % (rstd, var))
        if t >= 0:
            for r in range(4): e('v_fma_f32 %s, %s, %s, %s' % (tq[r], CS1[r], nmean, a[r]))
            cvt(Qp[2 * x], tq[0], tq[1]); cvt(Qp[2 * x + 1], tq[2], tq[3])
            e('v_mul_f32 %s, %s, %s' % (SCL[x], f32(0.25 * 1.4426950408889634), rstd))
        for r in range(4): e('v_fma_f32 %s, %s, %s, %s' % (tq[r], CS1[8 + r], nmean, a[8 + r]))
        for r in range(4): e('v_mul_f32 %s, %s, %s' % (tq[r], tq[r], rstd))
        cvt(vn[0], tq[0], tq[1]); cvt(vn[1], tq[2], tq[3])
        mfma16(Oa, vn, ident, 0)
        for r in range(4): e('v_fma_f32 %s, %s, %s, %s' % (tq[r], CS1[4 + r], nmean, a[4 + r]))
        for r in range(4): e('v_mul_f32 %s, %s, %s' % (tq[r], tq[r], rstd))
        cvt(Kp[2 * x], tq[0], tq[1]); cvt(Kp[2 * x + 1], tq[2], tq[3])
        cvt(VT[2 * x], Oa[0], Oa[1]); cvt(VT[2 * x + 1], Oa[2], Oa[3])
    def attention(j):
        x = sidx[j]
        mfma16(Sx[0:4], Kp[2 * x - 2:2 * x], Qp[2 * x:2 * x + 2], b0z if j == 0 else b0)
        mfma16(Sx[4:8], Kp[2 * x:2 * x + 2], Qp[2 * x:2 * x + 2], b1)
        e('v_max3_f32 %s, %s, %s, %s' % (t0, Sx[0], Sx[1], Sx[2]))
        e('v_max3_f32 %s, %s, %s, %s' % (t0, t0, Sx[3], Sx[4]))
        e('v_max3_f32 %s, %s, %s, %s' % (t0, t0, Sx[5], Sx[6]))
        e('v_max_f32 %s, %s, %s' % (t0, t0, Sx[7]))
        e('v_mov_b32 %s, %s' % (t1, t0))
        e('v_permlane32_swap_b32 %s, %s' % (t0, t1))
        e('v_max_f32 %s, %s, %s' % (t0, t0, t1))
        e('v_mov_b32 %s, %s' % (t1, t0))
        e('v_permlane16_swap_b32 %s, %s' % (t0, t1))
        e('v_max_f32 %s, %s, %s' % (t0, t0, t1))
        e('v_mul_f32 %s, %s, %s' % (t0, t0, SCL[x]))
        for r in range(8): e('v_fma_f32 %s, %s, %s, -%s' % (Sx[r], Sx[r], SCL[x], t0))
        for r in range(8): e('v_exp_f32 %s, %s' % (Sx[r], Sx[r]))
        for r in range(4): cvt(Pp[r], Sx[2 * r], Sx[2 * r + 1])
        mfma32(La, ones, Pp, 0)
        mfma32(Oa, VT[2 * x - 2:2 * x + 2], Pp, 0)
        e('v_rcp_f32 %s, %s' % (t0, La[0]))
        for r in range(4): e('v_mul_f32 %s, %s, %s' % (tq[r], Oa[r], t0))
        cvt(vn[0], tq[0], tq[1]); cvt(vn[1], tq[2], tq[3])
        e('s_add_u32 %s, %s, %d' % (sT[6], sO, j * HT))
        e('buffer_store_dwordx2 %s, %s, %s, %s offen' % (vn, vost, SRD_WS, sT[6]), 'o%d' % j)
        e('s_add_u32 %s, %s, %d' % (sT[6], sL4, 4 - j))
        publish('o%d' % j, vof, sFlg, sT[6])
    for n, t in enumerate(tiles):
        a = acc[n & 1]
        gemm(t, a)
        if n + 3 < len(tiles):
            wait(lgkm='all'); barrier()
            fetch(tiles[n + 3])
        finalize(t, a)
        if n >= 1: attention(tiles[n - 1])
    wait(lgkm='all')
    barrier()

class Epi:
    def __init__(self, V):
        self.vw0 = V.get(); self.vw1 = V.get(); self.vr = V.get()
        self.vst = V.get(); self.vss = V.get(); self.vfl = V.get()
        self.rd = V.get(16); self.x4 = V.get(4); self.sq = V.get(2)
    def setup(self, t0, t1, kind):
        e('v_and_b32 %s, 15, %s' % (t0, vLane))
        e('v_lshrrev_b32 %s, 4, %s' % (t1, vLane))
        e('v_and_b32 %s, 7, %s' % (self.vw0, t0))
        e('v_xor_b32 %s, %s, %s' % (self.vw0, self.vw0, t1))
        e('v_lshlrev_b32 %s, 4, %s' % (self.vw0, self.vw0))
        e('v_lshl_add_u32 %s, %s, 8, %s' % (self.vw0, t0, self.vw0))
        e('s_lshl_b32 %s, %s, 12' % (sT[8], sW))
        e('s_add_u32 %s, %s, %d' % (sT[8], sT[8], SC))
        e('v_add_u32 %s, %s, %s' % (self.vw0, sT[8], self.vw0))
        e('v_xor_b32 %s, 64, %s' % (self.vw1, self.vw0))
        e('s_lshl_b32 %s, %s, 2' % (sT[8], sW))
        e('v_add_u32 %s, %s, %s' % (t1, sT[8], t1))
        e('v_and_b32 %s, 7, %s' % (self.vr, t1))
        e('v_xor_b32 %s, %s, %s' % (self.vr, self.vr, t0))
        e('v_lshlrev_b32 %s, 4, %s' % (self.vr, self.vr))
        e('v_lshl_add_u32 %s, %s, 8, %s' % (self.vr, t1, self.vr))
        e('v_add_u32 %s, %d, %s' % (self.vr, SC, self.vr))
        if kind == FK_X1:
            e('v_lshrrev_b32 %s, 1, %s' % (self.vst, t0))
            e('v_lshlrev_b32 %s, 8, %s' % (self.vst, self.vst))
            e('v_lshl_add_u32 %s, %s, 4, %s' % (self.vst, t1, self.vst))
            e('v_and_b32 %s, 1, %s' % (t0, t0))
            e('v_lshl_add_u32 %s, %s, 3, %s' % (self.vst, t0, self.vst))
            e('s_lshl_b32 %s, %s, 11' % (sT[8], sC))
            e('v_add_u32 %s, %s, %s' % (self.vst, sT[8], self.vst))
        else:
            own_x_off(self.vst, t0)
        own_stat_off(self.vss, t0)
        own_flag_off(self.vfl, kind)
    def write(self, a, buf=0):
        for ft in range(4):
            e('ds_write_b128 %s, %s offset:%d' % ((self.vw0, self.vw1)[ft & 1], a[4 * ft:4 * ft + 4], buf + (ft >> 1) * 128), 'xw')
    def read(self, buf=0):
        for src in range(4):
            e('ds_read_b128 %s, %s offset:%d' % (self.rd[4 * src:4 * src + 4], self.vr, buf + src * 4096))
    def finish(self, j, srd_dst, sdst, sstat, sval, tag):
        rd = self.rd; x4 = self.x4
        unpack4(x4, RES[2 * j:2 * j + 2])
        for r in range(4):
            e('v_add_f32 %s, %s, %s' % (rd[r], rd[r], rd[4 + r]))
            e('v_add_f32 %s, %s, %s' % (rd[8 + r], rd[8 + r], rd[12 + r]))
        for r in range(4):
            e('v_add_f32 %s, %s, %s' % (rd[r], rd[r], rd[8 + r]))
        for r in range(4):
            e('v_add_f32 %s, %s, %s' % (x4[r], x4[r], rd[r]))
        cvt(RES[2 * j], x4[0], x4[1]); cvt(RES[2 * j + 1], x4[2], x4[3])
        e('buffer_store_dwordx2 %s, %s, %s, %s offen' % (RES[2 * j:2 * j + 2], self.vst, srd_dst, sdst), tag)
        row_stats(x4, self.sq[0], self.sq[1])
        e('buffer_store_dwordx2 %s, %s, %s, %s offen offset:%d' % (self.sq, self.vss, SRD_WS, sstat, j * 1024), tag)
        publish(tag, self.vfl, sFlg, sval)

def k2():
    V = Alloc('v', PBASE, 192)
    t0 = V.get(); t1 = V.get(); vp8 = V.get()
    E = Epi(V)
    of = [V.get(16) for _ in range(4)]
    acc = [V.get(16) for _ in range(2)]
    e('v_and_b32 %s, 7, %s' % (vp8, vLane))
    e('v_lshlrev_b32 %s, 2, %s' % (vp8, vp8))
    sFo = sT[0]
    e('s_lshl_b32 %s, %s, 7' % (sFo, sRb))
    e('s_lshl_b32 %s, %s, 5' % (sT[1], sW))
    e('s_add_u32 %s, %s, %s' % (sFo, sFo, sT[1]))
    e('s_add_u32 %s, %s, %s' % (sFo, sFo, sFlg))
    e('s_add_u32 %s, %s, %d' % (sFo, sFo, FK_O * 512))
    sO = sT[1]
    e('s_mul_i32 %s, %s, %d' % (sO, sRbT, HT))
    e('s_lshl_b32 %s, %s, 12' % (sT[2], sW))
    e('s_add_u32 %s, %s, %s' % (sO, sO, sT[2]))
    e('s_add_u32 %s, %s, 0x%x' % (sO, sO, HB))
    def fetch(j):
        e('s_add_u32 %s, %s, %d' % (sT[2], sL4, 4 - j))
        poll(vp8, sFo, sT[2])
        e('s_add_u32 %s, %s, %d' % (sT[3], sO, j * HT))
        for k in range(4):
            e('buffer_load_dwordx4 %s, %s, %s, %s offen offset:%d sc1' % (of[j][4 * k:4 * k + 4], vL16, SRD_WS, sT[3], k * 1024))
    fetch(3); fetch(2)
    E.setup(t0, t1, FK_X1)
    sX1 = sT[4]; sS1 = sT[5]
    e('s_lshl_b32 %s, %s, 14' % (sX1, sRbT))
    e('s_add_u32 %s, %s, 0x%x' % (sX1, sX1, X1))
    e('s_lshl_b32 %s, %s, 10' % (sS1, sRbT))
    e('s_add_u32 %s, %s, 0x%x' % (sS1, sS1, ST1))
    def gemm(j, a):
        for ks in range(4):
            for ft in range(4):
                c = a[4 * ft:4 * ft + 4]
                mfma32(c, W2[(ks * 4 + ft) * 4:(ks * 4 + ft) * 4 + 4], of[j][4 * ks:4 * ks + 4], 0 if ks == 0 else c)
    def fin(j, buf):
        E.read(buf)
        e('s_add_u32 %s, %s, %d' % (sT[6], sX1, j * 16384))
        e('s_add_u32 %s, %s, %d' % (sT[7], sL4, 4 - j))
        E.finish(j, SRD_WS, sT[6], sS1, sT[7], 'x1_%d' % j)
    gemm(3, acc[0]); gemm(2, acc[1])
    E.write(acc[0], 0); E.write(acc[1], 16384)
    fetch(1)
    wait(lgkm='all'); barrier()
    fin(3, 0); fin(2, 16384)
    gemm(1, acc[0])
    E.write(acc[0], 32768)
    fetch(0)
    gemm(0, acc[1])
    wait(lgkm='all'); barrier()
    E.write(acc[1], 0)
    fin(1, 32768)
    wait(lgkm='all'); barrier()
    fin(0, 0)
    wait(lgkm='all'); barrier()

NLDS4 = 8
W4A = Reg('a', 192, 64)
W4V = Reg('v', 128, 128)
def w4frag(f):
    if f < 16: return W4A[4 * f:4 * f + 4]
    if f < 48: return W4V[4 * (f - 16):4 * (f - 16) + 4]
    return None

def k3():
    V = Alloc('v', PBASE, 256)
    t0 = V.get(); t1 = V.get(); vp32 = V.get(); vwa = V.get(); vwb = V.get(); vsb = V.get(); vsc = V.get(); vfl = V.get(); vg16 = V.get()
    st = [V.get(4) for _ in range(2)]
    nm = V.get(2); vr = V.get(2); c0 = V.get(2); c1 = V.get(2); mx = V.get(3, 1)
    tt = V.get(8); hp = V.get(4)
    accB = V.get(56)
    assert V.cur <= 128, V.cur
    V.cur = 128
    accA = V.get(56)
    NW = 8; NX = 5
    wr = [V.get(4) for _ in range(NW)]
    xr = [V.get(8) for _ in range(NX)]
    e('v_and_b32 %s, 31, %s' % (vp32, vLane))
    e('v_lshlrev_b32 %s, 2, %s' % (vp32, vp32))
    sFx = sT[0]
    e('s_lshl_b32 %s, %s, 7' % (sFx, sW))
    e('s_add_u32 %s, %s, %s' % (sFx, sFx, sFlg))
    e('s_add_u32 %s, %s, %d' % (sFx, sFx, FK_X1 * 512))
    sX = sT[1]; sS = sT[2]; sH = sT[3]; sW4 = sT[4]
    e('s_lshl_b32 %s, %s, 14' % (sX, sWT))
    e('s_add_u32 %s, %s, 0x%x' % (sX, sX, X1))
    e('s_lshl_b32 %s, %s, 10' % (sS, sWT))
    e('s_add_u32 %s, %s, 0x%x' % (sS, sS, ST1))
    e('s_mul_i32 %s, %s, %d' % (sH, sWT, HT))
    e('s_mul_i32 %s, %s, 1792' % (sT[5], sMem))
    e('s_add_u32 %s, %s, %s' % (sH, sH, sT[5]))
    e('s_add_u32 %s, %s, 0x%x' % (sH, sH, HB))
    e('s_lshl_b32 %s, %s, 2' % (sW4, sC))
    e('s_add_u32 %s, %s, %s' % (sW4, sW4, sW))
    e('s_mul_i32 %s, %s, %d' % (sW4, sW4, 56 * 1024))
    e('s_add_u32 %s, %s, 0x%x' % (sW4, sW4, W4P))
    e('v_add_u32 %s, %d, %s' % (vwa, LW3, vL16))
    e('v_add_u32 %s, %d, %s' % (vwb, LW3 + 57344, vL16))
    e('v_and_b32 %s, 15, %s' % (t0, vLane))
    e('v_lshrrev_b32 %s, 4, %s' % (t1, vLane))
    e('v_lshlrev_b32 %s, 4, %s' % (vg16, t1))
    e('v_and_b32 %s, 1, %s' % (vsc, t1))
    e('v_lshlrev_b32 %s, 3, %s' % (vsc, vsc))
    e('v_lshl_add_u32 %s, %s, 4, %s' % (vsc, t0, vsc))
    e('v_lshrrev_b32 %s, 1, %s' % (t1, t1))
    e('v_lshl_add_u32 %s, %s, 8, %s' % (vsb, t1, vsc))
    e('v_xor_b32 %s, 1, %s' % (t1, t1))
    e('v_mul_u32_u24 %s, %d, %s' % (t1, HT, t1))
    e('v_add_u32 %s, %s, %s' % (vsc, vsc, t1))
    e('s_lshl_b32 %s, %s, 7' % (sT[5], sW))
    e('s_lshl_b32 %s, %s, 2' % (sT[6], sMem))
    e('s_add_u32 %s, %s, %s' % (sT[5], sT[5], sT[6]))
    e('s_add_u32 %s, %s, %d' % (sT[5], sT[5], FK_H * 512))
    e('v_mov_b32 %s, %s' % (vfl, sT[5]))

    def wread(idx):
        off = idx * 1024
        if off < 57344: e('ds_read_b128 %s, %s offset:%d' % (wr[idx % NW], vwa, off))
        else: e('ds_read_b128 %s, %s offset:%d' % (wr[idx % NW], vwb, off - 57344))
    def w4load(f):
        e('s_add_u32 %s, %s, %d' % (sT[7], sW4, f * 1024))
        if f < 48:
            e('buffer_load_dwordx4 %s, %s, %s, %s offen sc1' % (w4frag(f), vL16, SRD_WS, sT[7]))
        else:
            e('s_lshl_b32 %s, %s, 13' % (sT[8], sW))
            e('s_add_u32 m0, %s, %d' % (sT[8], SC + 16384 + (f - 48) * 1024))
            e('buffer_load_dwordx4 %s, %s, %s offen sc1 lds' % (vL16, SRD_WS, sT[7]), 'w4l')
    def gemm(ja, jb, a, extra):
        e('s_add_u32 %s, %s, %d' % (sT[5], sL4, 4 - jb))
        poll(vp32, sFx, sT[5])
        def xload(ks):
            for n, j in enumerate((ja, jb)):
                e('s_add_u32 %s, %s, %d' % (sT[6], sX, j * 16384 + ks * 1024))
                e('buffer_load_dwordx4 %s, %s, %s, %s offen sc1' % (xr[ks % NX][4 * n:4 * n + 4], vL16, SRD_WS, sT[6]))
        for ks in range(NX - 1): xload(ks)
        for n, j in enumerate((ja, jb)):
            e('buffer_load_dwordx4 %s, %s, %s, %s offen offset:%d sc1' % (st[n], vL16, SRD_WS, sS, j * 1024))
        for idx in range(NW - 1): wread(idx)
        for ks in range(16):
            if ks + NX - 1 < 16: xload(ks + NX - 1)
            for f in extra.get(ks, []): w4load(f)
            for tl in range(7):
                idx = ks * 7 + tl
                if idx + NW - 1 < 112: wread(idx + NW - 1)
                for n in range(2):
                    c = a[(n * 7 + tl) * 4:(n * 7 + tl) * 4 + 4]
                    mfma32(c, wr[idx % NW], xr[ks % NX][4 * n:4 * n + 4], 0 if ks == 0 else c)
    K0 = -2.0 * 1.4426950408889634 * 0.7978845608028654
    K1c = K0 * 0.044715
    def gelu4(g4, u4, C0, C1, VV, out2):
        for r in range(4): e('v_mul_f32 %s, %s, %s' % (tt[r], g4[r], g4[r]))
        for r in range(4): e('v_fma_f32 %s, %s, %s, %s' % (tt[r], tt[r], C1, C0))
        for r in range(4): e('v_mul_f32 %s, %s, %s' % (tt[r], tt[r], g4[r]))
        for r in range(4): e('v_exp_f32 %s, %s' % (tt[r], tt[r]))
        for r in range(4): e('v_mul_f32 %s, %s, %s' % (tt[4 + r], g4[r], u4[r]))
        for r in range(4): e('v_fma_f32 %s, %s, %s, %s' % (tt[r], tt[r], VV, VV))
        for r in range(4): e('v_rcp_f32 %s, %s' % (tt[r], tt[r]))
        for r in range(4): e('v_mul_f32 %s, %s, %s' % (tt[r], tt[r], tt[4 + r]))
        cvt(out2[0], tt[0], tt[1]); cvt(out2[1], tt[2], tt[3])
    def epi(ja, jb, a, k, cs):
        e('s_lshl_b32 %s, s2, 9' % sT[5])
        e('s_add_u32 %s, %s, 0x%x' % (sT[5], sT[5], CS3))
        for tl in range(7):
            e('buffer_load_dwordx4 %s, %s, %s, %s offen offset:%d sc1' % (cs[tl], vg16, SRD_WS, sT[5], (tl & 3) * 64 + (tl >> 2) * 256))
        for n in range(2):
            finish_stats(st[n], nm[n], vr[n], t0)
            e('v_rsq_f32 %s, %s' % (t0, vr[n]))
            e('v_mul_f32 %s, %s, %s' % (c0[n], f32(K0), t0))
            e('v_mul_f32 %s, %s, %s' % (t1, t0, t0))
            e('v_mul_f32 %s, %s, %s' % (t1, t1, t0))
            e('v_mul_f32 %s, %s, %s' % (c1[n], f32(K1c), t1))
        e('v_cmp_gt_u32 vcc, 32, %s' % vLane)
        e('v_cndmask_b32 %s, %s, %s, vcc' % (mx[0], c0[1], c0[0]))
        e('v_cndmask_b32 %s, %s, %s, vcc' % (mx[1], c1[1], c1[0]))
        e('v_cndmask_b32 %s, %s, %s, vcc' % (mx[2], vr[1], vr[0]))
        for n in range(2):
            for tl in range(7):
                for r in range(4):
                    x = a[(n * 7 + tl) * 4 + r]
                    e('v_fmac_f32 %s, %s, %s' % (x, cs[tl][r], nm[n]))
        tag = 'h%d' % k
        for n, j in enumerate((ja, jb)):
            T = lambda tl: a[(n * 7 + tl) * 4:(n * 7 + tl) * 4 + 4]
            e('s_add_u32 %s, %s, %d' % (sT[6], sH, j * HT))
            gelu4(T(0), T(1), c0[n], c1[n], vr[n], hp[0:2])
            gelu4(T(2), T(3), c0[n], c1[n], vr[n], hp[2:4])
            e('buffer_store_dwordx4 %s, %s, %s, %s offen' % (hp, vL16, SRD_WS, sT[6]), tag)
            gelu4(T(4), T(5), c0[n], c1[n], vr[n], T(0)[0:2])
            e('buffer_store_dwordx2 %s, %s, %s, %s offen offset:1024' % (T(0)[0:2], vsb, SRD_WS, sT[6]), tag)
        Ma = a[24:28]; Mb = a[52:56]
        for r in range(4): e('v_permlane32_swap_b32 %s, %s' % (Ma[r], Mb[r]))
        gelu4(Ma, Mb, mx[0], mx[1], mx[2], hp[0:2])
        e('buffer_store_dwordx2 %s, %s, %s, %s offen offset:1536' % (hp[0:2], vsc, SRD_WS, sT[6]), tag)
        e('s_add_u32 %s, %s, %d' % (sT[5], sL2, k))
        publish(tag, vfl, sFlg, sT[5])
    exA = {ks: [ks] for ks in range(16)}
    for q in range(8): exA[2 * q].append(48 + q)
    gemm(3, 2, accA, exA)
    epi(3, 2, accA, 1, wr)
    stamp('k3a')
    exB = {ks: [16 + ks] for ks in range(14)}
    gemm(1, 0, accB, exB)
    for f in range(38, 48): w4load(f)
    epi(1, 0, accB, 2, wr)
    for f in range(30, 38): w4load(f)

def k4():
    V = Alloc('v', PBASE, 128)
    t0 = V.get(); t1 = V.get(); vp8 = V.get(); vl4 = V.get()
    E = Epi(V)
    acc = [V.get(16) for _ in range(2)]
    lr = [V.get(4) for _ in range(2)]
    NH = (128 - V.cur) // 4
    hr = [V.get(4) for _ in range(NH)]
    e('v_and_b32 %s, 7, %s' % (vp8, vLane))
    e('v_lshlrev_b32 %s, 2, %s' % (vp8, vp8))
    sFh = sT[0]
    e('s_lshl_b32 %s, %s, 7' % (sFh, sRb))
    e('s_lshl_b32 %s, %s, 5' % (sT[1], sW))
    e('s_add_u32 %s, %s, %s' % (sFh, sFh, sT[1]))
    e('s_add_u32 %s, %s, %s' % (sFh, sFh, sFlg))
    e('s_add_u32 %s, %s, %d' % (sFh, sFh, FK_H * 512))
    sH = sT[1]
    e('s_mul_i32 %s, %s, %d' % (sH, sRbT, HT))
    e('s_mul_i32 %s, %s, %d' % (sT[2], sW, 14 * 1024))
    e('s_add_u32 %s, %s, %s' % (sH, sH, sT[2]))
    e('s_add_u32 %s, %s, 0x%x' % (sH, sH, HB))
    sS2 = sT[5]
    e('s_lshl_b32 %s, %s, 10' % (sS2, sRbT))
    e('s_add_u32 %s, %s, 0x%x' % (sS2, sS2, ST2))
    e('s_lshl_b32 %s, %s, 13' % (sT[2], sW))
    e('s_add_u32 %s, %s, %d' % (sT[2], sT[2], SC + 16384))
    e('v_add_u32 %s, %s, %s' % (vl4, sT[2], vL16))
    seq = [(j, ks) for j in ORDER for ks in range(14)]
    def hload(n):
        j, ks = seq[n]
        if ks == 0 and j in (3, 1):
            e('s_add_u32 %s, %s, %d' % (sT[2], sL2, 1 if j == 3 else 2))
            poll(vp8, sFh, sT[2])
        e('s_add_u32 %s, %s, %d' % (sT[3], sH, j * HT + ks * 1024))
        e('buffer_load_dwordx4 %s, %s, %s, %s offen sc1' % (hr[n % NH], vL16, SRD_WS, sT[3]))
    for n in range(NH - 1): hload(n)
    E.setup(t0, t1, FK_X)
    wait(vm='w4l')
    def fin(j):
        E.read(0)
        e('s_add_u32 %s, %s, %d' % (sT[6], sTokBase, j * 32768))
        e('s_mov_b32 %s, %d' % (sT[7], 4 - j))
        E.finish(j, SRD_DST, sT[6], sS2, sT[7], 'x2_%d' % j)
        if j == 3:
            e('s_lshl_b32 %s, %s, 15' % (sT[6], sGrp))
            e('s_add_u32 %s, %s, 0x%x' % (sT[6], sT[6], X2 + XH_REL))
            e('s_lshl_b32 %s, %s, 10' % (sT[7], sGrp))
            e('s_add_u32 %s, %s, 0x%x' % (sT[7], sT[7], STH))
            e('s_add_u32 %s, %s, %d' % (sT[4], sFlg, FK_HALO * 512))
            e('s_lshl_b32 %s, %s, 2' % (sT[8], sLayer))
            e('s_add_u32 %s, %s, %s' % (sT[8], sT[8], sRb))
            e('s_cmp_eq_u32 %s, 3' % sT[8])
            e('s_cselect_b32 %s, %s, 0x%x' % (sT[6], sT[6], OOB))
            e('s_cselect_b32 %s, %s, 0x%x' % (sT[7], sT[7], OOB))
            e('s_cselect_b32 %s, %s, 0x%x' % (sT[4], sT[4], OOB))
            e('buffer_store_dwordx2 %s, %s, %s, %s offen sc1' % (RES[6:8], E.vst, SRD_WS, sT[6]), 'halo')
            e('buffer_store_dwordx2 %s, %s, %s, %s offen sc1' % (E.sq, E.vss, SRD_WS, sT[7]), 'halo')
            publish('halo', E.vfl, sT[4], 1, always_sc1=True)
    for n, (j, ks) in enumerate(seq):
        a = acc[ORDER.index(j) & 1]
        if n + NH - 1 < len(seq): hload(n + NH - 1)
        for ft in range(4):
            f = ks * 4 + ft
            if f + 1 >= 48 and f + 1 < 56:
                e('ds_read_b128 %s, %s offset:%d' % (lr[(f + 1) & 1], vl4, (f + 1 - 48) * 1024))
            w = w4frag(f) if f < 48 else lr[f & 1]
            c = a[4 * ft:4 * ft + 4]
            mfma32(c, w, hr[n % NH], 0 if ks == 0 else c)
        if ks == 13:
            E.write(a, 0)
            wait(lgkm='all'); barrier()
            fin(j)
            wait(lgkm='all'); barrier()

def next_layer():
    e('s_cmp_eq_u32 %s, 1' % sLayer)
    e('s_cbranch_scc1 .Ldone')
    e('s_mov_b32 %s, 1' % sLayer)
    e('s_mov_b32 %s, 4' % sL4)
    e('s_mov_b32 %s, 2' % sL2)
    srd(SRD_TOK, P_WS, 0x240000, add=X2)
    srd(SRD_DST, P_OUT, 0x200000)
    e('s_add_u32 %s, %s, 0x%x' % (sStatBase, sStatBase, ST2 - ST0))
    e('s_sub_u32 %s, %s, 1024' % (sStatHalo, sStatBase))
    e('s_lshl_b32 %s, %s, 7' % (sT[0], sRb))
    e('s_add_u32 %s, %s, %s' % (sFlgHalo, sFlg, sT[0]))
    e('s_sub_u32 %s, %s, 128' % (sFlgHalo, sFlgHalo))
    e('s_sub_u32 %s, %s, 1' % (sT[0], sGrp))
    e('s_lshl_b32 %s, %s, 15' % (sT[1], sT[0]))
    e('s_add_u32 %s, %s, 0x%x' % (sT[1], sT[1], XH_REL))
    e('s_lshl_b32 %s, %s, 10' % (sT[2], sT[0]))
    e('s_add_u32 %s, %s, 0x%x' % (sT[2], sT[2], STH))
    e('s_sub_u32 %s, %s, %d' % (sT[3], sFlg, 4096 - FK_HALO * 512 - 3 * 128))
    e('s_cmp_eq_u32 %s, 0' % sRb)
    e('s_cselect_b32 %s, %s, %s' % (sTokHalo, sT[1], sTokHalo))
    e('s_cselect_b32 %s, %s, %s' % (sStatHalo, sT[2], sStatHalo))
    e('s_cselect_b32 %s, %s, %s' % (sFlgHalo, sT[3], sFlgHalo))
    e('s_cmp_eq_u32 %s, 1' % sFirst)
    e('s_cselect_b32 %s, %s, %s' % (sTokHalo, sTokBase, sTokHalo))
    e('s_cselect_b32 %s, %s, %s' % (sStatHalo, sStatBase, sStatHalo))
    e('s_cselect_b32 %s, %s, %s' % (sFlgHalo, sFlg, sFlgHalo))
    wait(vm='all', lgkm='all')
    e('s_branch .Llayer')

def build():
    prologue()
    S.append(Inst('.Llayer:'))
    k1(); stamp('k1')
    k2(); stamp('k2')
    k3(); stamp('k3')
    k4(); stamp('k4')
    next_layer()
    S.append(Inst('.Ldone:'))
    if STAMPS:
        e('s_lshl_b32 %s, s2, 2' % sT[0])
        e('s_add_u32 %s, %s, %s' % (sT[0], sT[0], sW))
        e('s_lshl_b32 %s, %s, 8' % (sT[0], sT[0]))
        e('s_add_u32 %s, %s, 0x%x' % (sT[0], sT[0], STAMP))
        e('v_lshlrev_b32 %s, 2, %s' % (vPoll, vLane))
        e('buffer_store_dword %s, %s, %s, %s offen' % (vStampV, vPoll, SRD_WS, sT[0]))
    S.append(Inst('.Lend:'))
    e('s_endpgm')
    st = insert_nops(insert_waits(S))
    hdr = open('interleave_layers__sliding_local_dilated__geglu_ffn__prompt.s.ref').read().splitlines()
    out = [l for l in hdr if l.startswith(';') and '@launch' not in l and 'Override launch' not in l and 'grid=ceil' not in l]
    out.append('; @launch grid=(256,1,1) block=(256,1,1) lds=%d' % LDS_TOTAL)
    out += ['.amdgcn_target "amdgcn-amd-amdhsa--gfx950"', '.text', '.globl %s' % KNAME, '.p2align 8', '.type %s,@function' % KNAME, KNAME + ':']
    for i in st:
        out.append(i.text if i.kind == 'label' else '    ' + i.text)
    for c in COLD:
        out.append(c if c.endswith(':') else '    ' + c)
    out.append('.Lcode_end:')
    out.append('    s_endpgm')
    out += ['.section .rodata,"a"', '.p2align 6', '.amdhsa_kernel %s' % KNAME,
            '  .amdhsa_next_free_vgpr 512', '  .amdhsa_next_free_sgpr 102', '  .amdhsa_accum_offset 256',
            '  .amdhsa_group_segment_fixed_size 0', '  .amdhsa_kernarg_size 80', '  .amdhsa_user_sgpr_count 2',
            '  .amdhsa_user_sgpr_kernarg_segment_ptr 1', '  .amdhsa_system_sgpr_workgroup_id_x 1', '.end_amdhsa_kernel']
    return '\n'.join(out) + '\n'

if __name__ == '__main__':
    assert all((i * 9363) >> 16 == i // 7 for i in range(448))
    txt = build()
    dst = [a for a in sys.argv[1:] if not a.startswith('--')]
    open(dst[0] if dst else 'interleave_layers__sliding_local_dilated__geglu_ffn__prompt.s', 'w').write(txt)
    if STAMPS:
        open('stamp_names.txt', 'w').write('\n'.join(STAMP_NAMES))
    print('instructions:', sum(1 for l in txt.splitlines() if l.startswith('    ')))
```

```python
import re

REG_RE = re.compile(r'^(-|\|)?([vas])(\d+)\|?$')
RANGE_RE = re.compile(r'^(-)?([vas])\[(\d+):(\d+)\]$')

def parse_operand(op):
    op = op.strip()
    if op.startswith('abs(') and op.endswith(')'):
        op = op[4:-1]
    if op.startswith('-abs(') and op.endswith(')'):
        op = op[5:-1]
    m = REG_RE.match(op)
    if m:
        return [(m.group(2), int(m.group(3)))]
    m = RANGE_RE.match(op)
    if m:
        return [(m.group(2), k) for k in range(int(m.group(3)), int(m.group(4)) + 1)]
    if op == 'vcc':
        return [('s', 'vcc')]
    if op in ('vcc_lo', 'vcc_hi'):
        return [('s', 'vcc')]
    if op in ('exec', 'exec_lo', 'exec_hi'):
        return [('s', 'exec')]
    if op == 'm0':
        return [('s', 'm0')]
    return []

TRANS = ('v_exp_f32', 'v_log_f32', 'v_rcp_f32', 'v_rsq_f32', 'v_sqrt_f32', 'v_sin_f32', 'v_cos_f32', 'v_rcp_iflag_f32')

class Inst:
    __slots__ = ('text', 'mn', 'kind', 'rd', 'wr', 'tag', 'srcC', 'srcAB', 'dpp_rd', 'wide_store', 'data', 'nop', 'raw', 'lds_dma')
    def __init__(self, text, tag=None, raw=False):
        self.text = text
        self.tag = tag
        self.raw = raw
        self.rd = set(); self.wr = set(); self.srcC = set(); self.srcAB = set(); self.dpp_rd = set()
        self.wide_store = False; self.data = set(); self.nop = 0; self.lds_dma = False
        t = text.split(';')[0].strip()
        if not t or t.endswith(':') or t.startswith('.'):
            self.mn = ''; self.kind = 'label' if t.endswith(':') else 'dir'
            return
        parts = t.split(None, 1)
        mn = parts[0]; self.mn = mn
        rest = parts[1] if len(parts) > 1 else ''
        ops = []; depth = 0; cur = ''
        for ch in rest:
            if ch in '[(': depth += 1
            if ch in '])': depth -= 1
            if ch == ',' and depth == 0:
                ops.append(cur); cur = ''
            else:
                cur += ch
        ops.append(cur)
        mods = ''
        if ops:
            last = ops[-1].strip().split(None, 1)
            if last:
                ops[-1] = last[0]
                mods = last[1] if len(last) > 1 else ''
        P = [parse_operand(o) for o in ops]
        base = mn
        for sfx in ('_e32', '_e64', '_dpp', '_sdwa'):
            if base.endswith(sfx): base = base[:-len(sfx)]
        def R(k):
            return set(P[k]) if k < len(P) else set()
        allsrc = lambda k0: set(x for k in range(k0, len(P)) for x in P[k])
        if mn.startswith('v_mfma'):
            self.kind = 'mfma'
            self.wr = R(0); self.srcAB = R(1) | R(2); self.srcC = R(3); self.rd = self.srcAB | self.srcC
        elif mn.startswith('ds_'):
            self.kind = 'ds'
            if mn.startswith('ds_read') or mn.startswith('ds_bpermute') or mn.startswith('ds_swizzle'):
                self.wr = R(0); self.rd = allsrc(1)
            else:
                self.rd = allsrc(0); self.data = allsrc(1)
        elif mn.startswith('buffer_') or mn.startswith('global_'):
            self.kind = 'vmem'
            if mn in ('buffer_wbl2', 'buffer_inv'):
                pass
            elif 'load' in mn:
                if re.search(r'\blds\b', mods) or '_lds_' in mn:
                    self.rd = allsrc(0) | {('s', 'm0')}; self.lds_dma = True
                else:
                    self.wr = R(0); self.rd = allsrc(1)
            else:
                self.rd = allsrc(0)
                self.data = R(0) if mn.startswith('buffer_') else R(1)
                self.wide_store = mn.endswith('x4') or mn.endswith('x3')
        elif mn.startswith('v_'):
            self.kind = 'trans' if base in TRANS else 'valu'
            if base.startswith('v_permlane') and 'swap' in base:
                self.wr = R(0) | R(1); self.rd = R(0) | R(1); self.kind = 'perm'
            elif base.startswith('v_cmp'):
                self.wr = R(0); self.rd = allsrc(1)
            elif base in ('v_fmac_f32', 'v_dot2c_f32_bf16', 'v_writelane_b32'):
                self.wr = R(0); self.rd = allsrc(0)
            elif base in ('v_add_co_u32', 'v_sub_co_u32', 'v_addc_co_u32'):
                self.wr = R(0) | R(1); self.rd = allsrc(2)
            else:
                self.wr = R(0); self.rd = allsrc(1)
                if base == 'v_cndmask_b32' and len(P) == 3:
                    self.rd |= {('s', 'vcc')}
            if mn.endswith('_dpp'):
                self.dpp_rd = R(1); self.rd |= R(0)
            if base in ('v_readfirstlane_b32', 'v_readlane_b32'):
                self.kind = 'rdlane'
        elif mn.startswith('s_'):
            self.kind = 'salu'
            if mn == 's_nop':
                self.nop = int(ops[0], 0)
            elif mn.startswith('s_cmp') or mn.startswith('s_cbranch') or mn in ('s_branch', 's_barrier', 's_waitcnt', 's_sleep', 's_setprio', 's_endpgm'):
                self.rd = allsrc(0)
                if mn.startswith('s_cbranch_vcc'): self.rd |= {('s', 'vcc')}
            elif mn.startswith('s_load') or mn == 's_memtime' or mn == 's_memrealtime':
                self.kind = 'smem'; self.wr = R(0); self.rd = allsrc(1)
            else:
                self.wr = R(0); self.rd = allsrc(1)
        else:
            raise ValueError('unknown instruction: ' + text)

    @property
    def is_valu(self):
        return self.kind in ('valu', 'trans', 'perm', 'rdlane')

def vregs(s):
    return {x for x in s if x[0] in 'va'}
def sregs(s):
    return {x for x in s if x[0] == 's'}

class Wait:
    def __init__(self, vm=None, lgkm=None):
        self.vm = vm; self.lgkm = lgkm

def insert_waits(stream):
    out = []
    vmq = []
    lq = []
    def need(q, pred):
        idx = -1
        for k, e in enumerate(q):
            if pred(e): idx = k
        return idx
    def emit_wait(vi, li):
        parts = []
        if vi >= 0:
            n = min(len(vmq) - 1 - vi, 63); parts.append('vmcnt(%d)' % n); del vmq[:len(vmq) - n]
        if li >= 0:
            n = min(len(lq) - 1 - li, 15); parts.append('lgkmcnt(%d)' % n); del lq[:len(lq) - n]
        if parts:
            out.append(Inst('s_waitcnt ' + ' '.join(parts)))
    for ins in stream:
        if isinstance(ins, Wait):
            def mk(t):
                if t is None: return lambda e: False
                if t == 'all': return lambda e: True
                tt = set(t) if isinstance(t, (list, tuple, set)) else {t}
                return lambda e: e[1] in tt
            emit_wait(need(vmq, mk(ins.vm)), need(lq, mk(ins.lgkm)))
            continue
        if ins.raw:
            out.append(ins); continue
        if ins.kind in ('label', 'dir'):
            out.append(ins); continue
        if ins.mn == 's_waitcnt':
            m = re.search(r'vmcnt\((\d+)\)', ins.text)
            if m:
                n = int(m.group(1));
                if len(vmq) > n: del vmq[:len(vmq) - n]
            m = re.search(r'lgkmcnt\((\d+)\)', ins.text)
            if m:
                n = int(m.group(1))
                if len(lq) > n: del lq[:len(lq) - n]
            out.append(ins); continue
        touched = vregs(ins.rd | ins.wr)
        if touched:
            emit_wait(need(vmq, lambda e: e[0] & touched), need(lq, lambda e: e[0] & touched))
        out.append(ins)
        if ins.kind == 'vmem':
            vmq.append((vregs(ins.wr), ins.tag))
            assert len(vmq) <= 63, 'too many outstanding vmem ops at: ' + ins.text
        elif ins.kind == 'ds':
            lq.append((vregs(ins.wr), ins.tag))
            if len(lq) > 15:
                pass
        elif ins.kind == 'smem':
            raise ValueError('smem must be emitted raw with its own wait: ' + ins.text)
    return out

def required_gap(p, c):
    g = 0
    pw = vregs(p.wr)
    if p.kind == 'mfma':
        if c.kind == 'mfma':
            if pw & c.srcAB: g = max(g, 8)
            if pw & c.srcC:
                same = (p.wr == c.srcC) and (p.mn == c.mn)
                if not same: g = max(g, 6)
            if (pw & c.wr) and not (p.wr == c.srcC and p.mn == c.mn):
                g = max(g, 6)
        elif c.is_valu or c.kind in ('ds', 'vmem'):
            if pw & (vregs(c.rd) | vregs(c.wr)): g = max(g, 8)
        if (c.is_valu or c.kind in ('ds', 'vmem')) and (vregs(p.srcC) & vregs(c.wr)): g = max(g, 3)
    elif p.is_valu:
        if c.kind == 'mfma' and (pw & c.rd): g = max(g, 2)
        if c.kind == 'perm' and (pw & c.rd): g = max(g, 2)
        if c.dpp_rd and (pw & c.dpp_rd): g = max(g, 2)
        if c.kind == 'rdlane' and (pw & c.rd): g = max(g, 1)
        if p.kind == 'trans' and c.is_valu and c.kind != 'trans' and (pw & c.rd): g = max(g, 1)
        if p.kind == 'trans' and c.kind in ('ds', 'vmem') and (pw & c.rd): g = max(g, 1)
        if p.mn.endswith('_sdwa') and c.is_valu and (pw & (c.rd | c.wr)): g = max(g, 1)
        ps = sregs(p.wr)
        if ps:
            if c.is_valu and (ps & c.rd): g = max(g, 4 if c.mn.startswith('v_writelane') or c.mn.startswith('v_readlane') else 2)
            if c.kind == 'vmem' and (ps & c.rd): g = max(g, 5)
            if c.kind == 'salu' and (ps & c.rd): g = max(g, 1)
    elif p.kind == 'salu':
        if ('s', 'm0') in p.wr and c.lds_dma: g = max(g, 1)
    if p.kind == 'vmem' and p.wide_store and (c.is_valu or c.kind in ('mfma', 'ds', 'vmem')) and (p.data & vregs(c.wr)):
        g = max(g, 2)
    if p.kind == 'ds' and p.data and (c.is_valu or c.kind == 'mfma') and (vregs(p.data) & vregs(c.wr)):
        g = max(g, 2)
    return g

def insert_nops(stream):
    out = []
    hist = []
    pos = 0
    for ins in stream:
        if ins.kind in ('label', 'dir'):
            out.append(ins); continue
        needp = 0
        for (p, pp) in hist:
            gq = required_gap(p, ins)
            if gq:
                have = pos - pp - 1
                needp = max(needp, gq - have)
        if needp > 0:
            n = Inst('s_nop %d' % (needp - 1)); out.append(n); pos += needp
        out.append(ins)
        hist.append((ins, pos))
        pos += 1 + ins.nop
        while hist and pos - hist[0][1] > 12:
            hist.pop(0)
    return out

class Alloc:
    def __init__(self, kind, lo, hi):
        self.kind = kind; self.lo = lo; self.hi = hi; self.cur = lo
    def get(self, n=1, align=None):
        al = align or (2 if n > 1 else 1)
        self.cur = (self.cur + al - 1) // al * al
        r = self.cur; self.cur += n
        assert self.cur <= self.hi, 'out of %s registers (%d > %d)' % (self.kind, self.cur, self.hi)
        return Reg(self.kind, r, n)

class Reg:
    def __init__(self, kind, idx, n=1):
        self.kind = kind; self.idx = idx; self.n = n
    def __str__(self):
        return '%s%d' % (self.kind, self.idx) if self.n == 1 else '%s[%d:%d]' % (self.kind, self.idx, self.idx + self.n - 1)
    __repr__ = __str__
    def __getitem__(self, k):
        if isinstance(k, slice):
            a = k.start or 0; b = k.stop if k.stop is not None else self.n
            assert 0 <= a < b <= self.n, (a, b, self.n)
            return Reg(self.kind, self.idx + a, b - a)
        assert 0 <= k < self.n, (k, self.n)
        return Reg(self.kind, self.idx + k, 1)
    def sub(self, a, n):
        return self[a:a + n]

class Gap:
    def __init__(self, n): self.n = n

def weight(x):
    if isinstance(x, (list, tuple)): return sum(weight(y) for y in x)
    if isinstance(x, Gap): return 0
    if isinstance(x, Wait): return 1
    if x.kind in ('label', 'dir'): return 0
    if x.kind in ('mfma', 'trans'): return 2
    return 1

def ninst(x):
    if isinstance(x, (list, tuple)): return sum(ninst(y) for y in x)
    if isinstance(x, (Gap, Wait)): return 0
    if x.kind in ('label', 'dir'): return 0
    return 1

def flat(x):
    out = []
    for y in x:
        if isinstance(y, (list, tuple)): out += flat(y)
        elif isinstance(y, Gap): pass
        else: out.append(y)
    return out

def weave(prim, sec, start=0, end=None):
    is_m = lambda x: isinstance(x, Inst) and x.kind == 'mfma'
    nm = sum(1 for x in prim if is_m(x))
    if end is None or end > nm: end = nm
    k = 0; wp = 0
    for x in prim:
        if is_m(x): k += 1
        elif start < k <= end: wp += weight(x)
    ws = sum(weight(x) for x in sec)
    per = (wp + ws) / max(1, end - start)
    out = []; si = 0; k = 0; used = 0.0; clock = 0; ready = 0
    n = len(prim); i = 0
    while i < n:
        x = prim[i]; out.append(x); clock += ninst(x); i += 1
        if is_m(x):
            k += 1
            if start < k <= end:
                while i < n and not is_m(prim[i]):
                    out.append(prim[i]); clock += ninst(prim[i]); used += weight(prim[i]); i += 1
                budget = per * (k - start)
                while si < len(sec):
                    y = sec[si]
                    if isinstance(y, Gap):
                        ready = clock + y.n; si += 1; continue
                    if clock < ready: break
                    if used + weight(y) * 0.5 > budget: break
                    out.append(y); used += weight(y); clock += ninst(y); si += 1
                if k == end:
                    out += sec[si:]; si = len(sec)
    out += sec[si:]
    return out

MARKS = {}
def insert_waits2(stream, lds_age=28, vm_age=260):
    out = []
    vmq = []; lq = []
    clock = [0]
    def need(q, pred):
        idx = -1
        for k, e in enumerate(q):
            if pred(e): idx = k
        return idx
    def extend(q, idx, age):
        while idx >= 0 and idx + 1 < len(q) and clock[0] - q[idx + 1][2] >= age and not q[idx + 1][3]:
            idx += 1
        return idx
    def emit_wait(vi, li):
        parts = []
        if vi >= 0:
            vi = extend(vmq, vi, vm_age)
            n = min(len(vmq) - 1 - vi, 63); parts.append('vmcnt(%d)' % n); del vmq[:len(vmq) - n]
        if li >= 0:
            li = extend(lq, li, lds_age)
            n = min(len(lq) - 1 - li, 15); parts.append('lgkmcnt(%d)' % n); del lq[:len(lq) - n]
        if parts:
            out.append(Inst('s_waitcnt ' + ' '.join(parts))); clock[0] += 1
    for ins in stream:
        if isinstance(ins, Wait):
            def mk(t):
                if t is None: return lambda e: False
                if t == 'all': return lambda e: True
                tt = set(t) if isinstance(t, (list, tuple, set)) else {t}
                return lambda e: e[1] in tt
            emit_wait(need(vmq, mk(ins.vm)), need(lq, mk(ins.lgkm)))
            continue
        if ins.kind in ('label', 'dir'):
            if ins.tag == 'reset':
                del vmq[:]; del lq[:]
            if ins.tag and ins.tag.startswith('mark:'):
                MARKS[ins.tag[5:]] = ([(sorted(map(str, x[0])), x[1]) for x in vmq], [(sorted(map(str, x[0])), x[1]) for x in lq])
                for q in (vmq, lq):
                    for z in range(len(q)): q[z] = (q[z][0], q[z][1], clock[0], q[z][3])
            if ins.tag and ins.tag.startswith('same:'):
                now = ([(sorted(map(str, x[0])), x[1]) for x in vmq], [(sorted(map(str, x[0])), x[1]) for x in lq])
                assert now == MARKS[ins.tag[5:]], ('queue state differs at back edge', now, MARKS[ins.tag[5:]])
            out.append(ins); continue
        if ins.raw:
            out.append(ins); clock[0] += 1; continue
        if ins.mn == 's_waitcnt':
            m = re.search(r'vmcnt\((\d+)\)', ins.text)
            if m:
                n = int(m.group(1))
                if len(vmq) > n: del vmq[:len(vmq) - n]
            m = re.search(r'lgkmcnt\((\d+)\)', ins.text)
            if m:
                n = int(m.group(1))
                if len(lq) > n: del lq[:len(lq) - n]
            out.append(ins); clock[0] += 1; continue
        touched = vregs(ins.rd | ins.wr)
        if touched:
            emit_wait(need(vmq, lambda e: e[0] & touched), need(lq, lambda e: e[0] & touched))
        if ins.kind == 'vmem' and len(vmq) >= 63:
            emit_wait(0, -1)
        out.append(ins); clock[0] += weight(ins)
        slow = bool(ins.tag) and str(ins.tag).startswith('~')
        if ins.kind == 'vmem':
            vmq.append((vregs(ins.wr), ins.tag, clock[0], slow))
        elif ins.kind == 'ds':
            lq.append((vregs(ins.wr), ins.tag, clock[0], slow))
        elif ins.kind == 'smem':
            raise ValueError('smem must be emitted raw with its own wait: ' + ins.text)
    return out


def place(prim, items):
    is_m = lambda x: isinstance(x, Inst) and x.kind == 'mfma'
    items = sorted(items, key=lambda t: t[0])
    out = []; k = -1; it = 0
    while it < len(items) and items[it][0] < 0:
        out.append(items[it][1]); it += 1
    for x in prim:
        out.append(x)
        if is_m(x):
            k += 1
            while it < len(items) and items[it][0] <= k:
                out.append(items[it][1]); it += 1
    out += [y for _, y in items[it:]]
    return out

def sprinkle(prim, items, every, first=0):
    out = []; clock = 0; nxt = first; it = 0
    for x in prim:
        while it < len(items) and clock >= nxt:
            out.append(items[it]); clock += weight(items[it]); it += 1; nxt = clock + every
        out.append(x); clock += weight(x)
    out += items[it:]
    return out
```

```python
import sys, struct
from contextlib import contextmanager
from asmlib import *

KNAME = 'interleave_layers__sliding_local_dilated__geglu_ffn__prompt_kernel'
STAMPS = '--stamps' in sys.argv
FORCE_SLOW = '--slow' in sys.argv

W2P = 0x100000; W4P = 0x200000
X1 = 0x400000; X2 = 0x600000; XH_REL = 0x200000
ST0 = 0x840000; ST1 = 0x860000; ST2 = 0x880000; STH = 0x8A0000
FL = 0x8B0000; CS = 0x0; STAMP = 0x980000
HB = 0xA00000; WS_END = 0x1100000
HT = 57344
OOB = 0x2000000
FK_X, FK_O, FK_X1, FK_H, FK_HALO = 0, 1, 2, 3, 4
LW3 = 0; SC = 114688; LDS_TOTAL = 163840
SLOT = 16384

def f32(x): return '0x%08x' % struct.unpack('<I', struct.pack('<f', x))[0]

STACK = [[]]
COLD = []
def cur(): return STACK[-1]
def e(t, tag=None): cur().append(Inst(t, tag))
def raw(t): cur().append(Inst(t, raw=True))
def wait(vm=None, lgkm=None): cur().append(Wait(vm, lgkm))
def gap(n): cur().append(Gap(n))
def label(l, tag=None): cur().append(Inst(l + ':', tag))
@contextmanager
def capture():
    L = []; STACK.append(L)
    try: yield L
    finally: STACK.pop()
@contextmanager
def atomic():
    L = []; STACK.append(L)
    try: yield L
    finally:
        STACK.pop(); cur().append(L)
def put(L): cur().extend(L)
_lab = [0]
def newlabel(p):
    _lab[0] += 1; return '.L%s_%d' % (p, _lab[0])

SRD_WS = 's[4:7]'; SRD_TOK = 's[8:11]'; SRD_DST = 's[12:15]'; SRD_A = 's[16:19]'; SRD_B = 's[20:23]'; SRD_DBG = 's[24:27]'
P_X, P_QKV, P_WO, P_BX, P_G, P_U, P_D, P_OUT, P_DBG, P_WS = [28 + 2 * k for k in range(10)]
sa = Alloc('s', 48, 102)
G = lambda: sa.get()
sW, sGrp, sMem, sRb, sC, sLayer, sSpin, sFirst = [G() for _ in range(8)]
sTokBase, sTokW, sTokHaloW, sStatBase, sStatHalo, sFlg, sFlgHalo = [G() for _ in range(7)]
sFX, sFO, sFX1, sFH = [G() for _ in range(4)]
sPub, sPubH = G(), G()
sOst, sOld, sX1st, sS1st, sX1ld, sS1ld, sHst, sHld, sW2, sW4, sCS, sM0 = [G() for _ in range(12)]
sL4, sL2, sNX = G(), G(), G()
sInv = G()
sP = [G() for _ in range(3)]
sQ = [G() for _ in range(4)]
sStamp = sa.get(2); sM = sa.get(2)
sT = [Reg('s', k) for k in (16, 17, 18, 20, 21, 22)]

W1 = Reg('a', 0, 192)
PV = Alloc('v', 0, 256)
vTid = PV.get(); vLane = PV.get(); vL16 = PV.get(); vPoll = PV.get(); vStampV = PV.get(); vTmpF = PV.get()
vP32 = PV.get(); vP8 = PV.get(); vZ = PV.get()
vW0 = PV.get(); vW1 = PV.get(); vR = PV.get(); vSX1 = PV.get(); vSX2 = PV.get(); vSS = PV.get()
vDma0 = PV.get()
RES = PV.get(8)
PBASE = PV.cur

SLOW = [False]
def SF(): return ' sc1' if SLOW[0] else ''

_st = {}
STAMP_NAMES = []
OPT = {a[2:].split('=')[0]: (a.split('=')[1] if '=' in a else '1') for a in sys.argv[1:] if a.startswith('--')}
def opt(k, d): return int(OPT.get(k, d))
def stamp(name):
    if not STAMPS: return
    if 'st' in OPT and name != 'start' and not any(name.startswith(p) for p in OPT['st'].split(',')): return
    if name not in _st:
        _st[name] = len(STAMP_NAMES); STAMP_NAMES.append(name)
    idx = _st[name]
    assert idx < 30
    with atomic():
        wait(lgkm='all')
        raw('s_memtime %s' % sStamp)
        raw('s_waitcnt lgkmcnt(0)')
        e('s_lshl_b32 %s, %s, 5' % (sStamp[1], sLayer))
        e('s_add_u32 m0, %s, %d' % (sStamp[1], idx))
        e('v_writelane_b32 %s, %s, m0' % (vStampV, sStamp[0]))

def rstamp(idx):
    if not STAMPS: return
    raw('s_memrealtime %s' % sStamp)
    raw('s_waitcnt lgkmcnt(0)')
    e('v_writelane_b32 %s, %s, %d' % (vStampV, sStamp[0], idx))

def srd(dst, ptr, size, add=0):
    d = int(dst[2:].split(':')[0])
    if add:
        e('s_add_u32 s%d, s%d, 0x%x' % (d, ptr, add))
        e('s_addc_u32 s%d, s%d, 0' % (d + 1, ptr + 1))
        e('s_and_b32 s%d, s%d, 0xffff' % (d + 1, d + 1))
    else:
        e('s_mov_b32 s%d, s%d' % (d, ptr))
        e('s_and_b32 s%d, s%d, 0xffff' % (d + 1, ptr + 1))
    e('s_mov_b32 s%d, 0x%x' % (d + 2, size))
    e('s_mov_b32 s%d, 0x20000' % (d + 3))

def mfma32(d, a, b, c): e('v_mfma_f32_16x16x32_bf16 %s, %s, %s, %s' % (d, a, b, c))
def mfma16(d, a, b, c): e('v_mfma_f32_16x16x16_bf16 %s, %s, %s, %s' % (d, a, b, c))
def cvt(d, a, b): e('v_cvt_pk_bf16_f32 %s, %s, %s' % (d, a, b))
def sadd(d, a, imm): e('s_add_u32 %s, %s, 0x%x' % (d, a, imm))
def smad(d, a, mul, add, tmp=None):
    if mul & (mul - 1) == 0: e('s_lshl_b32 %s, %s, %d' % (d, a, mul.bit_length() - 1))
    else: e('s_mul_i32 %s, %s, %d' % (d, a, mul))
    if isinstance(add, int):
        if add: sadd(d, d, add)
    else: e('s_add_u32 %s, %s, %s' % (d, d, add))

SPIN_MAX = 1000000
def poll_issue(voff, soff, srd_=SRD_WS, off=0):
    e('buffer_load_dword %s, %s, %s, %s offen offset:%d sc1' % (vPoll, voff, srd_, soff, off))
def poll_check(voff, soff, sneed, srd_=SRD_WS, sleep=0, off=0):
    slow = newlabel('ps'); back = newlabel('pb')
    with atomic():
        e('v_cmp_gt_u32 vcc, %s, %s' % (sneed, vPoll))
        e('s_cbranch_vccnz %s' % slow)
        label(back)
    C = COLD
    C.append(slow + ':')
    if SLOW[0] or sleep: C.append('s_sleep %d' % max(8, sleep))
    C.append('buffer_load_dword %s, %s, %s, %s offen offset:%d sc1' % (vPoll, voff, srd_, soff, off))
    C.append('s_add_u32 %s, %s, 1' % (sSpin, sSpin))
    C.append('s_cmp_gt_u32 %s, %d' % (sSpin, SPIN_MAX))
    C.append('s_cbranch_scc1 .Lend')
    C.append('s_waitcnt vmcnt(0)')
    C.append('v_cmp_gt_u32 vcc, %s, %s' % (sneed, vPoll))
    C.append('s_nop 1')
    C.append('s_cbranch_vccnz %s' % slow)
    C.append('s_branch %s' % back)

def publish(tags, soff, off, val, sc1=False):
    with atomic():
        if val[0] is None: e('v_mov_b32 %s, %d' % (vTmpF, val[1]))
        else: e('v_add_u32_e64 %s, %s, %d' % (vTmpF, val[0], val[1]))
        wait(vm=tags)
        e('buffer_store_dword %s, off, %s, %s offset:%d%s' % (vTmpF, SRD_WS, soff, off, ' sc1' if sc1 else SF()))

def barrier(): e('s_barrier')

def load_frags(dsts, sbase, stmp, tag=None, first=0):
    for k, d in enumerate(dsts):
        kk = k + first
        with atomic():
            if k == 0 or kk % 4 == 0:
                sadd(stmp, sbase, (kk // 4) * 4096)
            e('buffer_load_dwordx4 %s, %s, %s, %s offen offset:%d sc1' % (d, vL16, SRD_WS, stmp, (kk % 4) * 1024), tag)

def row_stats(x4, s, q):
    e('v_add_f32 %s, %s, %s' % (s, x4[0], x4[1]))
    e('v_mul_f32 %s, %s, %s' % (q, x4[0], x4[0]))
    e('v_add_f32 %s, %s, %s' % (s, s, x4[2]))
    e('v_fmac_f32 %s, %s, %s' % (q, x4[1], x4[1]))
    e('v_add_f32 %s, %s, %s' % (s, s, x4[3]))
    e('v_fmac_f32 %s, %s, %s' % (q, x4[2], x4[2]))
    e('v_fmac_f32 %s, %s, %s' % (q, x4[3], x4[3]))
    e('v_add_f32_dpp %s, %s, %s row_ror:8 row_mask:0xf bank_mask:0xf' % (s, s, s))
    gap(1)
    e('v_add_f32_dpp %s, %s, %s row_ror:8 row_mask:0xf bank_mask:0xc' % (s, q, q))
    for m in ('row_half_mirror', 'quad_perm:[1,0,3,2]', 'quad_perm:[2,3,0,1]'):
        gap(2)
        e('v_add_f32_dpp %s, %s, %s %s row_mask:0xf bank_mask:0xf' % (s, s, s, m))

def unpack4(dst4, src2):
    e('v_lshlrev_b32 %s, 16, %s' % (dst4[0], src2[0]))
    e('v_and_b32 %s, 0xffff0000, %s' % (dst4[1], src2[0]))
    e('v_lshlrev_b32 %s, 16, %s' % (dst4[2], src2[1]))
    e('v_and_b32 %s, 0xffff0000, %s' % (dst4[3], src2[1]))

def finish_stats(raw4, nmean, var, t):
    e('v_add_f32 %s, %s, %s' % (nmean, raw4[0], raw4[2]))
    e('v_add_f32 %s, %s, %s' % (var, raw4[1], raw4[3]))
    gap(2)
    e('v_permlane32_swap_b32 %s, %s' % (nmean, var))
    e('v_add_f32 %s, %s, %s' % (nmean, nmean, var))
    e('v_mov_b32 %s, %s' % (t, nmean))
    gap(2)
    e('v_permlane16_swap_b32 %s, %s' % (nmean, t))
    e('v_add_f32 %s, %s, %s' % (nmean, nmean, t))
    e('v_mov_b32 %s, %s' % (var, nmean))
    gap(2)
    e('v_permlane32_swap_b32 %s, %s' % (nmean, var))
    e('v_mul_f32 %s, %s, %s' % (nmean, sInv, nmean))
    e('v_mul_f32 %s, %s, %s' % (var, sInv, var))
    e('v_fmac_f32 %s, %s, %s' % (var, nmean, nmean))
    e('v_min_f32 %s, 0, %s' % (var, var))
    e('v_sub_f32 %s, %s, %s' % (var, f32(1e-5), var))

def item(fn, *a, **k):
    with capture() as L: fn(*a, **k)
    return flat(L)
def items(fn, *a, **k):
    with capture() as L: fn(*a, **k)
    return L
def ld4(dst, voff, soff, off, tag=None):
    e('buffer_load_dwordx4 %s, %s, %s, %s offen offset:%d sc1' % (dst, voff, SRD_WS, soff, off), tag)

def tok_dma(ldsoff, ssrc, tag, tmps):
    for k in range(4):
        with atomic():
            if k == 0: e('s_add_u32 m0, %s, %d' % (sM0, ldsoff))
            if k < 3: e('v_xor_b32 %s, %d, %s' % (tmps[k & 1], (k + 1) * 1040, vDma0))
            e('buffer_load_dwordx4 %s, %s, %s offen offset:%d sc1 lds' % (vDma0 if k == 0 else tmps[(k - 1) & 1], SRD_TOK, ssrc, k * 1024), tag)

def vr(a, n=4): return Reg('v', a, n)

NKD = 12
PKST = NKD * 12288
V7A = Reg('a', 192, 8)
CS1 = vr(192, 12)

def prologue():
    a, b, c, d = sQ; p0, p1, p2 = sP
    e('s_cmp_ge_u32 s2, 256')
    e('s_cbranch_scc1 .Lend')
    raw('s_load_dwordx16 s[28:43], s[0:1], 0')
    raw('s_load_dwordx4 s[44:47], s[0:1], 64')
    V = Alloc('v', PBASE, 192)
    t0 = V.get(); t1 = V.get(); t2 = V.get(); t3 = V.get(); vi = V.get(); vg = V.get()
    vq = V.get(); vch = V.get(); va = V.get(); vF0 = V.get()
    stg = V.get(4 * 3 * (16 - NKD))
    vo = V.get(2, 1); tw = V.get(4); vmode = V.get(2)
    e('v_and_b32 %s, 63, v0' % vLane)
    e('v_lshrrev_b32 %s, 6, v0' % vPoll)
    e('v_lshlrev_b32 %s, 4, %s' % (vL16, vLane))
    e('v_readfirstlane_b32 %s, %s' % (sW, vPoll))
    e('v_mov_b32 %s, 0' % vStampV)
    e('v_mov_b32 %s, 0' % vZ)
    e('s_and_b32 %s, s2, 7' % sGrp)
    e('s_lshr_b32 %s, s2, 3' % sMem)
    e('s_lshr_b32 %s, %s, 3' % (sRb, sMem))
    e('s_and_b32 %s, %s, 7' % (sC, sMem))
    e('s_mov_b32 %s, 0' % sLayer)
    e('s_mov_b32 %s, 0' % sSpin)
    e('s_and_b32 %s, %s, 3' % (a, sGrp))
    smad(a, a, 4, sRb)
    e('s_cmp_eq_u32 %s, 0' % a)
    e('s_cselect_b32 %s, 1, 0' % sFirst)
    e('s_lshr_b32 %s, %s, 2' % (b, sGrp))
    e('s_lshl_b32 %s, %s, 10' % (b, b))
    smad(sTokBase, a, 1 << 17, b)
    e('v_and_b32 %s, 15, %s' % (vi, vLane))
    e('v_lshrrev_b32 %s, 4, %s' % (vg, vLane))
    e('s_lshl_b32 %s, %s, 7' % (b, sC))
    smad(a, sW, 8192, b)
    e('v_lshlrev_b32 %s, 11, %s' % (vSX2, vg))
    e('v_lshl_add_u32 %s, %s, 3, %s' % (vSX2, vi, vSX2))
    e('v_add_u32 %s, %s, %s' % (vSX2, a, vSX2))
    e('v_lshrrev_b32 %s, 3, %s' % (t0, vLane))
    e('v_and_b32 %s, 2, %s' % (t1, t0))
    e('v_and_b32 %s, 7, %s' % (vch, vLane))
    e('v_xor_b32 %s, %s, %s' % (vch, vch, t1))
    e('v_lshlrev_b32 %s, 4, %s' % (vch, vch))
    e('v_mul_u32_u24 %s, 3072, %s' % (vq, t0))
    e('v_add_u32 %s, %s, %s' % (vq, vq, vch))
    e('s_and_b32 %s, %s, 1' % (a, sW))
    e('s_lshl_b32 %s, %s, 6' % (a, a))
    e('v_xor_b32 %s, %s, %s' % (vq, a, vq))
    smad(p0, sW, 8 * 3072, b)
    e('s_lshl_b32 %s, %s, 10' % (p1, sW))
    e('v_lshl_add_u32 %s, %s, 10, %s' % (vo[0], t0, vch))
    e('v_xor_b32 %s, 64, %s' % (vo[1], vo[0]))
    e('v_lshlrev_b32 %s, 25, %s' % (vF0, vLane))
    e('s_getreg_b32 %s, hwreg(HW_REG_XCC_ID, 0, 3)' % a)
    e('s_lshl_b32 %s, %s, 3' % (a, a))
    e('s_lshl_b64 %s, 1, %s' % (sM, a))
    e('v_mov_b32 %s, %s' % (tw[2], sM[0]))
    e('v_mov_b32 %s, %s' % (tw[3], sM[1]))
    smad(sFlg, sGrp, 4096, FL)
    sdst = sOst; ssrc = sOld
    smad(c, sW, 256, Reg('s', 2))
    e('s_and_b32 %s, %s, 7' % (d, c))
    e('s_cmp_lt_u32 %s, 128' % c)
    e('s_cselect_b32 %s, 0, 128' % a)
    e('s_cselect_b32 %s, 16, 56' % b)
    e('s_cselect_b32 %s, 0x%x, 0x%x' % (sdst, W2P, W4P)) if False else None
    e('s_sub_u32 %s, %s, %s' % (a, c, a))
    e('s_lshr_b32 %s, %s, 3' % (a, a))
    e('s_mul_i32 %s, %s, %s' % (b, b, d))
    e('s_add_u32 %s, %s, %s' % (b, b, a))
    e('s_lshl_b32 %s, %s, 12' % (b, b))
    e('s_lshl_b32 %s, %s, 15' % (ssrc, a))
    e('s_lshl_b32 %s, %s, 7' % (d, d))
    e('s_add_u32 %s, %s, %s' % (ssrc, ssrc, d))
    e('s_mov_b32 %s, 0x%x' % (d, W4P))
    e('s_cmp_lt_u32 %s, 128' % c)
    e('s_cselect_b32 %s, 0x%x, %s' % (d, W2P, d))
    e('s_add_u32 %s, %s, %s' % (sdst, b, d))
    e('s_cmp_ge_u32 %s, 576' % c)
    e('s_cselect_b32 %s, 0x%x, %s' % (sdst, OOB, sdst))
    e('s_cselect_b32 %s, 0x%x, 0' % (d, OOB))
    e('v_add_u32 %s, %s, %s' % (vo[0], d, vo[0]))
    e('v_add_u32 %s, %s, %s' % (vo[1], d, vo[1]))
    e('s_cselect_b32 %s, 0, %s' % (ssrc, ssrc))
    smad(p2, sW, 4096, PKST)
    raw('s_waitcnt lgkmcnt(0)')
    srd(SRD_B, P_QKV, 512 * 3072)
    srd(SRD_TOK, P_X, 0x200000)
    e('s_cmp_lt_u32 %s, 128' % c)
    e('s_cselect_b32 s16, s%d, s%d' % (P_WO, P_D))
    e('s_cselect_b32 s17, s%d, s%d' % (P_WO + 1, P_D + 1))
    e('s_mov_b32 s18, 0x%x' % (1792 * 1024))
    e('s_cselect_b32 s18, 0x%x, s18' % (512 * 1024))
    e('s_and_b32 s17, s17, 0xffff')
    e('s_mov_b32 s19, 0x20000')
    srd(SRD_WS, P_WS, WS_END)
    srd(SRD_DBG, P_DBG, 256)
    stamp('start')
    rstamp(30)
    for p in range(4):
        e('s_add_u32 m0, %s, %d' % (p2, p * 1024))
        e('buffer_load_dwordx4 %s, %s, %s offen lds' % (vo[p & 1], SRD_A, ssrc), 'pack')
        if p < 3: sadd(ssrc, ssrc, 8192)
    smad(a, sGrp, 8, 8)
    e('s_cmp_eq_u32 %s, 3' % sW)
    e('s_cselect_b32 %s, %s, 0x%x' % (b, a, OOB))
    e('buffer_atomic_add_x2 %s, %s, %s, %s offen sc1' % (tw[2:4], vF0, SRD_DBG, b), 'pub')
    smad(b, sMem, 128, sFlg)
    e('s_cmp_eq_u32 %s, 3' % sW)
    e('s_cselect_b32 %s, %s, 0x%x' % (b, b, OOB))
    e('s_cmp_lt_u32 %s, 20' % sMem)
    e('s_cselect_b32 %s, %s, 0x%x' % (b, b, OOB))
    e('v_and_b32 %s, 31, %s' % (vP32, vLane))
    e('v_lshlrev_b32 %s, 2, %s' % (vP32, vP32))
    e('buffer_store_dword %s, %s, %s, %s offen sc1' % (vZ, vP32, SRD_WS, b), 'pub')
    for j in range(4):
        sadd(a, sTokBase, j * 32768)
        e('buffer_load_dwordx2 %s, %s, %s, %s offen' % (RES[2 * j:2 * j + 2], vSX2, SRD_TOK, a))
    e('s_getpc_b64 %s' % sM)
    label('.Lpc0')
    e('s_sub_u32 %s, %s, .Lpc0-%s' % (sM[0], sM[0], KNAME))
    e('s_subb_u32 %s, %s, 0' % (sM[1], sM[1]))
    e('s_and_b32 %s, %s, 1' % (a, sMem))
    e('s_lshl_b32 %s, %s, 15' % (a, a))
    e('v_lshlrev_b32 %s, 7, v0' % t1)
    e('v_add_u32 %s, %s, %s' % (t1, a, t1))
    e('v_min_u32 %s, .Lfast_end-%s-4, %s' % (t1, KNAME, t1))
    e('global_load_dword %s, %s, %s' % (tw[0], t1, sM))
    e('v_lshlrev_b32 %s, 21, %s' % (t1, vLane))
    smad(a, Reg('s', 2), 4, sW)
    smad(a, a, 128, 0x1C0000)
    e('buffer_load_dword %s, %s, %s, %s offen' % (tw[1], t1, SRD_WS, a))
    for ks in range(16):
        sadd(a, p0, ks * 32 * 3072)
        for sec in range(3):
            if ks < NKD:
                e('s_add_u32 m0, %s, %d' % (p1, (ks * 3 + sec) * 4096 - sec * 1024))
                e('buffer_load_dwordx4 %s, %s, %s offen offset:%d lds' % (vq, SRD_B, a, sec * 1024), 'w1')
            else:
                q = ((ks - NKD) * 3 + sec) * 4
                e('buffer_load_dwordx4 %s, %s, %s, %s offen offset:%d' % (stg[q:q + 4], vq, SRD_B, a, sec * 1024), 'w1v')
    e('v_bfe_u32 %s, %s, 2, 2' % (t1, vLane))
    e('v_lshl_add_u32 %s, %s, 3, %s' % (va, vg, t1))
    e('v_lshlrev_b32 %s, 7, %s' % (va, va))
    e('v_and_b32 %s, 1, %s' % (t0, vg))
    e('v_lshlrev_b32 %s, 1, %s' % (t0, t0))
    e('v_lshrrev_b32 %s, 1, %s' % (t1, t1))
    e('v_or_b32 %s, %s, %s' % (t0, t0, t1))
    e('v_lshl_add_u32 %s, %s, 5, %s' % (va, t0, va))
    e('v_and_b32 %s, 3, %s' % (t0, vLane))
    e('v_lshl_add_u32 %s, %s, 3, %s' % (va, t0, va))
    vx = V.get(4, 1); fr = V.get(16)
    e('v_add_u32 %s, %s, %s' % (t0, p2, va))
    for ft in range(4): e('v_xor_b32 %s, %d, %s' % (vx[ft], ft * 32, t0))
    wait(vm='pack')
    for ft in range(4):
        f = fr[4 * ft:4 * ft + 4]
        e('ds_read_b64_tr_b16 %s, %s' % (f[0:2], vx[ft]))
        e('ds_read_b64_tr_b16 %s, %s offset:512' % (f[2:4], vx[ft]))
    for ft in range(4):
        e('buffer_store_dwordx4 %s, %s, %s, %s offen offset:%d sc1' % (fr[4 * ft:4 * ft + 4], vL16, SRD_WS, sdst, ft * 1024), 'pub')
    scalars()
    persistent_vregs(vi, vg, t0, t1)
    srd(SRD_A, P_G, 512 * 3584)
    srd(SRD_B, P_U, 512 * 3584)
    e('s_mov_b32 %s, 9363' % a)
    e('s_mov_b32 %s, %d' % (b, 3584 - 112))
    for t in range(7):
        e('v_add_u32 %s, %d, %s' % (t0, 64 * t, vLane))
        e('v_mul_lo_u32 %s, %s, %s' % (t1, t0, a))
        e('v_lshrrev_b32 %s, 16, %s' % (t1, t1))
        e('v_mul_lo_u32 %s, %s, %s' % (t1, t1, b))
        e('v_lshl_add_u32 %s, %s, 4, %s' % (t1, t0, t1))
        e('v_accvgpr_write_b32 %s, %s' % (V7A[t], t1))
    w1f = [W1[4 * k:4 * k + 4] for k in range(48)]
    vw = V.get(3, 1)
    e('s_lshl_b32 %s, %s, 5' % (a, sW))
    e('v_xor_b32 %s, %s, %s' % (vw[0], a, va))
    e('v_add_u32 %s, %d, %s' % (vw[1], 61440, vw[0]))
    e('v_add_u32 %s, %d, %s' % (vw[2], 2 * 61440, vw[0]))
    e('s_lshl_b32 %s, %s, 10' % (a, sW))
    e('v_add_u32 %s, %s, %s' % (t2, a, vL16))
    ones = V.get(4)
    for k in range(4): e('v_mov_b32 %s, 0x3f803f80' % ones[k])
    wait(vm='w1')
    stamp('w1land')
    barrier()
    smad(a, sGrp, 8, 8)
    e('buffer_load_dwordx2 %s, off, %s, %s sc1' % (vmode, SRD_DBG, a))
    def tr_w1(ks, sec, off):
        f = w1f[sec * 16 + ks]
        r = vw[off // 61440]; o = off % 61440
        e('ds_read_b64_tr_b16 %s, %s offset:%d' % (f[0:2], r, o))
        e('ds_read_b64_tr_b16 %s, %s offset:%d' % (f[2:4], r, o + 512))
    for ks in range(NKD):
        for sec in range(3): tr_w1(ks, sec, (ks * 3 + sec) * 4096)
    wait(vm='pub', lgkm='all')
    barrier()
    stamp('w1tr')
    e('v_mov_b32 %s, 1' % t3)
    e('s_cmp_lg_u32 %s, 0' % sW)
    e('s_cselect_b32 %s, 0x%x, 0' % (d, OOB))
    e('buffer_atomic_add %s, %s, %s, %s offen offset:128 sc1' % (t3, vF0, SRD_DBG, d))
    with capture() as TK:
        for n, t in enumerate([3, 2, 1, 0, -1]):
            if t >= 0: sadd(b, sTokW, t * 32768)
            tok_dma((n - 2) * SLOT, b if t >= 0 else sTokHaloW, 'tok%d' % t, (t0, t1))
    with capture() as R2:
        for q in range(3 * (16 - NKD)):
            e('ds_write_b128 %s, %s offset:%d' % (t2, stg[4 * q:4 * q + 4], q * 4096))
        for ks in range(NKD):
            for sec in range(3):
                cc = CS1[4 * sec:4 * sec + 4]
                mfma32(cc, w1f[sec * 16 + ks], ones, 0 if ks == 0 else cc)
            if ks == 3:
                wait(lgkm='all')
                barrier()
                for k2 in range(NKD, 16):
                    for sec in range(3): tr_w1(k2, sec, ((k2 - NKD) * 3 + sec) * 4096)
        for ks in range(NKD, 16):
            for sec in range(3):
                cc = CS1[4 * sec:4 * sec + 4]
                mfma32(cc, w1f[sec * 16 + ks], ones, cc)
    put(sprinkle(R2, TK, 5))
    e('v_lshlrev_b32 %s, 4, %s' % (t0, vg))
    smad(a, sW, 256, sCS)
    for sec in range(3):
        e('buffer_store_dwordx4 %s, %s, %s, %s offen offset:%d' % (CS1[4 * sec:4 * sec + 4], t0, SRD_WS, a, 2048 + sec * 64))
    lm = newlabel('md'); lo = newlabel('mo')
    label(lm)
    e('v_sad_u8 %s, %s, 0, 0' % (t1, vmode[0]))
    e('v_sad_u8 %s, %s, 0, %s' % (t1, vmode[1], t1))
    e('v_or_b32 %s, %s, %s' % (t0, vmode[0], vmode[1]))
    e('v_readfirstlane_b32 %s, %s' % (b, t1))
    e('v_readfirstlane_b32 %s, %s' % (a, t0))
    e('s_cmp_lg_u32 %s, 32' % b)
    e('s_cbranch_scc1 %s' % lo)
    C = COLD
    C += [lo + ':', 's_sleep 8', 's_lshl_b32 %s, %s, 3' % (a, sGrp), 's_add_u32 %s, %s, 8' % (a, a),
          'buffer_load_dwordx2 %s, off, %s, %s sc1' % (vmode, SRD_DBG, a),
          's_add_u32 %s, %s, 1' % (sSpin, sSpin), 's_cmp_gt_u32 %s, %d' % (sSpin, SPIN_MAX), 's_cbranch_scc1 .Lend',
          's_waitcnt vmcnt(0)', 's_branch %s' % lm]
    stamp('p0end')
    e('s_and_b32 %s, %s, 0x20202020' % (a, a))
    if FORCE_SLOW: e('s_branch .Lslow')
    e('s_cbranch_scc0 .Lslow')

def scalars():
    c, d = sQ[2], sQ[3]; p0, p1 = sP[0], sP[1]
    e('s_mov_b32 %s, 0' % sL4); e('s_mov_b32 %s, 0' % sL2); e('s_mov_b32 %s, 1' % sNX)
    e('s_mov_b32 %s, %s' % (sInv, f32(-1.0 / 512)))
    srd(SRD_DST, P_WS, 0x200000, add=X2)
    smad(sCS, Reg('s', 2), 4096, CS)
    smad(sTokW, sW, 8192, sTokBase)
    e('s_sub_u32 %s, %s, 32768' % (sTokHaloW, sTokW))
    e('s_cmp_eq_u32 %s, 1' % sFirst)
    e('s_cselect_b32 %s, %s, %s' % (sTokHaloW, sTokW, sTokHaloW))
    smad(sFX, sRb, 128, sFlg)
    smad(sFO, sW, 32, sFX)
    sadd(sFH, sFO, FK_H * 512)
    sadd(sFO, sFO, FK_O * 512)
    smad(sFX1, sW, 128, sFlg)
    smad(sPubH, sMem, 4, sFX1)
    sadd(sPubH, sPubH, FK_H * 512)
    sadd(sFX1, sFX1, FK_X1 * 512)
    smad(c, sC, 4, sW)
    smad(sPub, c, 4, sFX)
    smad(sW2, c, 16384, W2P)
    smad(sW4, c, 56 * 1024, W4P)
    smad(p0, sGrp, 4, sRb)
    smad(p1, sGrp, 4, sW)
    smad(d, p0, 4 * HT, HB)
    smad(sOst, c, 512, d)
    smad(sOld, sW, 4096, d)
    smad(sHld, sW, 14 * 1024, d)
    smad(sX1st, p0, 65536, X1)
    smad(sS1st, p0, 4096, ST1)
    sadd(sStatBase, sS1st, ST2 - ST1)
    smad(sX1ld, p1, 65536, X1)
    smad(sS1ld, p1, 4096, ST1)
    smad(d, p1, 4 * HT, HB)
    smad(sHst, sMem, 1792, d)
    smad(sM0, sW, 4096, SC)
    e('s_sub_u32 %s, %s, 1024' % (sStatHalo, sStatBase))
    e('s_sub_u32 %s, %s, 128' % (sFlgHalo, sFX))
    smad(c, sGrp, 1024, STH - 1024)
    e('s_sub_u32 %s, %s, %d' % (d, sFlg, 4096 - FK_HALO * 512 - 3 * 128))
    e('s_cmp_eq_u32 %s, 0' % sRb)
    e('s_cselect_b32 %s, %s, %s' % (sStatHalo, c, sStatHalo))
    e('s_cselect_b32 %s, %s, %s' % (sFlgHalo, d, sFlgHalo))
    e('s_cmp_eq_u32 %s, 1' % sFirst)
    e('s_cselect_b32 %s, %s, %s' % (sStatHalo, sStatBase, sStatHalo))
    e('s_cselect_b32 %s, %s, %s' % (sFlgHalo, sFX, sFlgHalo))

def persistent_vregs(vi, vg, t0, t1):
    d = sQ[3]
    e('v_and_b32 %s, 28, %s' % (vP8, vP32))
    e('s_lshl_b32 %s, %s, 6' % (d, sW))
    e('v_xor_b32 %s, %s, %s' % (vDma0, d, vL16))
    e('v_and_b32 %s, 48, %s' % (vSS, vLane))
    e('v_add_u32 %s, %s, %s' % (vSS, d, vSS))
    e('s_lshr_b32 %s, %s, 1' % (d, sC))
    e('s_lshl_b32 %s, %s, 8' % (d, d))
    e('v_add_u32 %s, %s, %s' % (vSS, d, vSS))
    e('s_and_b32 %s, %s, 1' % (d, sC))
    e('s_lshl_b32 %s, %s, 3' % (d, d))
    e('v_add_u32 %s, %s, %s' % (vSS, d, vSS))
    e('v_bfe_u32 %s, %s, 3, 1' % (t0, vLane))
    e('v_lshl_add_u32 %s, %s, 2, %s' % (vSS, t0, vSS))
    e('v_and_b32 %s, 7, %s' % (vW0, vi))
    e('v_xor_b32 %s, %s, %s' % (vW0, vW0, vg))
    e('v_lshlrev_b32 %s, 4, %s' % (vW0, vW0))
    e('v_lshl_add_u32 %s, %s, 8, %s' % (vW0, vi, vW0))
    e('v_add_u32 %s, %s, %s' % (vW0, sM0, vW0))
    e('v_xor_b32 %s, 64, %s' % (vW1, vW0))
    e('s_lshl_b32 %s, %s, 2' % (d, sW))
    e('v_add_u32 %s, %s, %s' % (t1, d, vg))
    e('v_and_b32 %s, 7, %s' % (vR, t1))
    e('v_xor_b32 %s, %s, %s' % (vR, vR, vi))
    e('v_lshlrev_b32 %s, 4, %s' % (vR, vR))
    e('v_lshl_add_u32 %s, %s, 8, %s' % (vR, t1, vR))
    e('v_add_u32 %s, %d, %s' % (vR, SC, vR))
    e('v_lshrrev_b32 %s, 3, %s' % (t0, vi))
    e('v_lshlrev_b32 %s, 11, %s' % (vSX1, t0))
    e('v_bfe_u32 %s, %s, 1, 2' % (t0, vi))
    e('v_lshl_add_u32 %s, %s, 8, %s' % (vSX1, t0, vSX1))
    e('v_lshl_add_u32 %s, %s, 4, %s' % (vSX1, t1, vSX1))
    e('v_and_b32 %s, 1, %s' % (t0, vi))
    e('v_lshl_add_u32 %s, %s, 3, %s' % (vSX1, t0, vSX1))
    e('s_lshl_b32 %s, %s, 12' % (d, sC))
    e('v_add_u32 %s, %s, %s' % (vSX1, d, vSX1))

W2 = vr(128, 64)
ORDER = [3, 2, 1, 0]

def x_write(a, buf):
    for ft in range(4):
        e('ds_write_b128 %s, %s offset:%d' % ((vW0, vW1)[ft & 1], a[ft], buf + (ft >> 1) * 128), 'xw')
def x_read(rd, buf):
    for src in range(4):
        e('ds_read_b128 %s, %s offset:%d' % (rd[src], vR, buf + src * 4096), 'xr')
def x_finish(j, rd, x4, sq, vst, srd_dst, sdst, doff, sstat, tag, pk):
    unpack4(x4, RES[2 * j:2 * j + 2])
    if pk:
        for h in (0, 2):
            e('v_pk_add_f32 %s, %s, %s' % (rd[0][h:h + 2], rd[0][h:h + 2], rd[1][h:h + 2]))
            e('v_pk_add_f32 %s, %s, %s' % (rd[2][h:h + 2], rd[2][h:h + 2], rd[3][h:h + 2]))
        for h in (0, 2): e('v_pk_add_f32 %s, %s, %s' % (rd[0][h:h + 2], rd[0][h:h + 2], rd[2][h:h + 2]))
        for h in (0, 2): e('v_pk_add_f32 %s, %s, %s' % (x4[h:h + 2], x4[h:h + 2], rd[0][h:h + 2]))
    else:
        for r in range(4):
            e('v_add_f32 %s, %s, %s' % (rd[0][r], rd[0][r], rd[1][r]))
            e('v_add_f32 %s, %s, %s' % (rd[2][r], rd[2][r], rd[3][r]))
        for r in range(4): e('v_add_f32 %s, %s, %s' % (rd[0][r], rd[0][r], rd[2][r]))
        for r in range(4): e('v_add_f32 %s, %s, %s' % (x4[r], x4[r], rd[0][r]))
    cvt(RES[2 * j], x4[0], x4[1]); cvt(RES[2 * j + 1], x4[2], x4[3])
    e('buffer_store_dwordx2 %s, %s, %s, %s offen offset:%d%s' % (RES[2 * j:2 * j + 2], vst, srd_dst, sdst, doff, SF()), tag)
    row_stats(x4, sq[0], sq[1])
    e('buffer_store_dword %s, %s, %s, %s offen offset:%d%s' % (sq[0], vSS, SRD_WS, sstat, j * 1024, SF()), tag)
def zip2(A, B):
    A = flat(A); B = flat(B); out = []
    for k in range(max(len(A), len(B))):
        if k < len(A): out.append(A[k])
        if k < len(B): out.append(B[k])
    return out

class R3:
    t0 = vr(24, 1); t1 = vr(25, 1); vwb = vr(26, 1); vsb = vr(27, 1); vsc = vr(28, 1); vg16 = vr(29, 1)
    st = vr(30, 8); nm = vr(38, 2); KA = vr(40, 10); KB = vr(50, 10); tt = vr(60, 8); hp = vr(68, 4)
    accB = vr(72, 56); accA = vr(128, 56)
    NW = 8; NX = 5
    wr = [vr(184 + 4 * k) for k in range(8)]
    xr = [vr(216 + 8 * k, 8) for k in range(5)]
def k3_xload(n, m):
    ps, ks = divmod(n, 16)
    with atomic():
        if ks % 2 == 0 and m == 0: sadd(sP[0], sX1ld, (1 - ps) * 32768 + ks * 2048)
        ld4(R3.xr[n % R3.NX][4 * m:4 * m + 4], vL16, sP[0], (ks & 1) * 2048 + m * 1024)
def k3_statload(ja, m):
    ld4(R3.st[4 * m:4 * m + 4], vL16, sS1ld, (ja - m) * 1024)

def k12(F):
    assert PBASE == 24
    t0, t1, t2, d1, d2, d3 = [vr(24 + k, 1) for k in range(6)]
    vrd = vr(30, 4); vost = vr(34, 1); nmean = vr(35, 1); var = vr(36, 1); rstd = vr(37, 1)
    SCL = vr(38, 2); vn = vr(40, 2); vo2 = vr(42, 2)
    Oa = vr(44); La = vr(48); tq = vr(52); b1 = vr(56); b0z = vr(60); ones = vr(64); Qp = vr(68)
    Kp = vr(72, 10); VT = vr(82, 10); ident = vr(92, 2); pad = vr(94, 2); b0 = vr(96)
    Sx = vr(100, 8); Pp = vr(108); acc = [vr(112, 12), vr(240, 12)]
    straw = [vr(204), vr(208), vr(212)]
    NR = 6
    ring = [vr(216 + 4 * k) for k in range(NR)]
    sp0 = vr(124); sp1 = vr(252)
    ofA = [straw[2], sp0, sp1, vr(240)]; ofB = ring[0:4]
    kaccA = [vr(244), vr(248), ring[4], ring[5]]; kaccB = [b0, vr(192), vr(196), vr(200)]
    of2A = [Oa, La, tq, b1]; of2B = [b0z, ones, Qp, vr(112)]
    kacc2A = [vr(116), vr(120), straw[0], straw[1]]; kacc2B = [vr(192), vr(196), vr(200), sp0]
    dmask = [d2, d3, pad[0], pad[1]]
    tiles = [3, 2, 1, 0, -1]
    slot = {3: 1, 2: 2, 1: 0, 0: 1, -1: 2}
    if F: slot = {3: 0, 2: 1, 1: 0, 0: 1, -1: 2}
    sidx = {-1: 0, 0: 1, 1: 2, 2: 3, 3: 4}
    SR = lambda t: straw[sidx[t] % 3]
    SG = lambda t: ((straw[0], straw[1]), (straw[2], sp0))[tiles.index(t) & 1]
    q0, q1, q2, q3 = sQ; p0, p1, p2 = sP

    def stat_load(t):
        if t >= 0: ld4(SR(t), vL16, sStatBase, t * 1024)
        else: ld4(SR(t), vL16, sStatHalo, 0)
    def consts():
        e('v_lshrrev_b32 %s, 1, %s' % (t2, t1))
        e('v_lshlrev_b32 %s, 8, %s' % (vost, t2))
        e('v_lshl_add_u32 %s, %s, 4, %s' % (vost, t0, vost))
        e('v_and_b32 %s, 1, %s' % (t2, t1))
        e('v_lshl_add_u32 %s, %s, 3, %s' % (vost, t2, vost))
        e('v_lshlrev_b32 %s, 2, %s' % (t2, t1))
        e('v_sub_u32 %s, %s, %s' % (t2, t2, t0))
        e('v_mov_b32 %s, 0xff800000' % tq[0])
        e('v_mov_b32 %s, 0x3f80' % tq[1])
        e('v_mov_b32 %s, 1.0' % tq[2])
        with atomic():
            e('s_cmp_eq_u32 %s, 1' % sFirst)
            e('s_cselect_b64 %s, -1, 0' % sM)
        for r in range(4):
            with atomic():
                e('v_cmp_gt_i32 vcc, %d, %s' % (9 - r, t2))
                e('v_add_u32 %s, %d, %s' % (tq[3], 7 + r, t2))
                e('v_cndmask_b32 %s, 0, %s, vcc' % (b0[r], tq[0]))
                e('v_cmp_le_u32 vcc, 8, %s' % tq[3])
                e('v_cndmask_b32 %s, %s, %s, %s' % (b0z[r], b0[r], tq[0], sM))
                e('v_cndmask_b32 %s, 0, %s, vcc' % (b1[r], tq[0]))
        for p in range(2):
            with atomic():
                e('v_cmp_eq_i32 vcc, %d, %s' % (-2 * p, t2))
                e('v_cndmask_b32 %s, 0, %s, vcc' % (ident[p], tq[1]))
                if F: e('v_cndmask_b32 %s, 0, %s, vcc' % (dmask[2 * p], tq[2]))
                e('v_cmp_eq_i32 vcc, %d, %s' % (-2 * p - 1, t2))
                e('v_cndmask_b32 %s, %s, %s, vcc' % (ident[p], ident[p], tq[2]))
                if F: e('v_cndmask_b32 %s, 0, %s, vcc' % (dmask[2 * p + 1], tq[2]))
    def finalize(t, a):
        x = sidx[t]
        if F:
            S_, G_ = SG(t)
            e('v_mul_f32 %s, %s, %s' % (var, G_[0], dmask[0]))
            for r in range(1, 4): e('v_fmac_f32 %s, %s, %s' % (var, G_[r], dmask[r]))
            e('v_mov_b32 %s, %s' % (t2, var))
            e('v_mul_f32 %s, %s, %s' % (nmean, sInv, S_[0]))
            gap(1)
            e('v_permlane32_swap_b32 %s, %s' % (var, t2))
            e('v_add_f32 %s, %s, %s' % (var, var, t2))
            e('v_mov_b32 %s, %s' % (t2, var))
            gap(2)
            e('v_permlane16_swap_b32 %s, %s' % (var, t2))
            e('v_add_f32 %s, %s, %s' % (var, var, t2))
            e('v_mul_f32 %s, %s, %s' % (var, sInv, var))
            e('v_fmac_f32 %s, %s, %s' % (var, nmean, nmean))
            e('v_min_f32 %s, 0, %s' % (var, var))
            e('v_sub_f32 %s, %s, %s' % (var, f32(1e-5), var))
        else:
            finish_stats(SR(t), nmean, var, t2)
        e('v_rsq_f32 %s, %s' % (rstd, var))
        for r in range(4): e('v_fmac_f32 %s, %s, %s' % (a[8 + r], CS1[8 + r], nmean))
        for r in range(4): e('v_mul_f32 %s, %s, %s' % (a[8 + r], a[8 + r], rstd))
        cvt(vn[0], a[8], a[9]); cvt(vn[1], a[10], a[11])
        for r in range(2): e('v_fmac_f32 %s, %s, %s' % (a[4 + r], CS1[4 + r], nmean))
        mfma16(a[8:12], vn, ident, 0)
        for r in range(2, 4): e('v_fmac_f32 %s, %s, %s' % (a[4 + r], CS1[4 + r], nmean))
        for r in range(4): e('v_mul_f32 %s, %s, %s' % (a[4 + r], a[4 + r], rstd))
        cvt(Kp[2 * x], a[4], a[5]); cvt(Kp[2 * x + 1], a[6], a[7])
    def finalize_b(t, a):
        x = sidx[t]
        if t >= 0:
            for r in range(4): e('v_fmac_f32 %s, %s, %s' % (a[r], CS1[r], nmean))
            cvt(Qp[2 * (x & 1)], a[0], a[1]); cvt(Qp[2 * (x & 1) + 1], a[2], a[3])
            e('v_mul_f32 %s, %s, %s' % (SCL[x & 1], f32(0.25 * 1.4426950408889634), rstd))
        cvt(VT[2 * x], a[8], a[9]); cvt(VT[2 * x + 1], a[10], a[11])
    def att_a(j):
        x = sidx[j]; q = Qp[2 * (x & 1):2 * (x & 1) + 2]
        mfma16(Sx[4:8], Kp[2 * x:2 * x + 2], q, b1)
        gap(1)
        mfma16(Sx[0:4], Kp[2 * x - 2:2 * x], q, b0z if j == 0 else b0)
    def att_b(j):
        x = sidx[j]; sc = SCL[x & 1]
        e('v_max3_f32 %s, %s, %s, %s' % (t0, Sx[4], Sx[5], Sx[6]))
        e('v_max3_f32 %s, %s, %s, %s' % (t0, t0, Sx[7], Sx[0]))
        e('v_max3_f32 %s, %s, %s, %s' % (t0, t0, Sx[1], Sx[2]))
        e('v_max_f32 %s, %s, %s' % (t0, t0, Sx[3]))
        e('v_mov_b32 %s, %s' % (t1, t0))
        gap(2)
        e('v_permlane32_swap_b32 %s, %s' % (t0, t1))
        e('v_max_f32 %s, %s, %s' % (t0, t0, t1))
        e('v_mov_b32 %s, %s' % (t1, t0))
        gap(2)
        e('v_permlane16_swap_b32 %s, %s' % (t0, t1))
        e('v_max_f32 %s, %s, %s' % (t0, t0, t1))
        e('v_mul_f32 %s, %s, %s' % (t0, t0, sc))
        for r in range(8):
            e('v_fma_f32 %s, %s, %s, -%s' % (Sx[r], Sx[r], sc, t0))
        for r in range(8):
            e('v_exp_f32 %s, %s' % (Sx[r], Sx[r]))
            if r in (3, 5, 7): cvt(Pp[(r - 3) // 2], Sx[r - 3], Sx[r - 2])
        sadd(q2, sOst, j * HT)
        cvt(Pp[3], Sx[6], Sx[7])
        gap(2)
        mfma32(La, ones, Pp, 0)
        mfma32(Oa, VT[2 * x - 2:2 * x + 2], Pp, 0)
        gap(7)
        e('v_rcp_f32 %s, %s' % (t0, La[0]))
        gap(1)
        for r in range(4): e('v_mul_f32 %s, %s, %s' % (tq[r], Oa[r], t0))
        cvt(vo2[0], tq[0], tq[1]); cvt(vo2[1], tq[2], tq[3])
        e('buffer_store_dwordx2 %s, %s, %s, %s offen%s' % (vo2, vost, SRD_WS, q2, SF()), 'o%d' % j)
    def fin_att(t, a, j):
        finalize(t, a)
        if j is not None: att_a(j)
        finalize_b(t, a)
        if j is not None:
            if t < 0: gap(5)
            att_b(j)
    def pub_o(j): publish('o%d' % j, sPub, FK_O * 512, (sL4, 4 - j))

    seq = [(t, ks) for t in tiles for ks in range(16)]
    def rd(n):
        t, ks = seq[n]
        if F and n == 32:
            for s in range(4): e('v_add_u32 %s, %d, %s' % (vrd[s], 2 * SLOT, vrd[s]))
        e('ds_read_b128 %s, %s offset:%d' % (ring[n % NR], vrd[ks & 3], slot[t] * SLOT + (ks >> 2) * 256), 'rd%d' % t)
    e('v_and_b32 %s, 15, %s' % (t0, vLane))
    e('v_lshrrev_b32 %s, 4, %s' % (t1, vLane))
    e('v_xor_b32 %s, %s, %s' % (t2, t1, t0))
    e('v_lshlrev_b32 %s, 4, %s' % (t2, t2))
    e('v_lshl_add_u32 %s, %s, 10, %s' % (t2, t0, t2))
    e('v_add_u32 %s, %d, %s' % (vrd[0], SC - (2 * SLOT if F else 0), t2))
    for s in range(1, 4): e('v_xor_b32 %s, %d, %s' % (vrd[s], 64 * s, vrd[0]))
    for k in range(4): e('v_mov_b32 %s, 0x3f803f80' % ones[k])
    wait(vm='tok3', lgkm='all')
    barrier()
    nxt = [0]
    def issue_upto(n):
        while nxt[0] <= n and nxt[0] < len(seq):
            rd(nxt[0]); nxt[0] += 1
    issue_upto(NR - 3)
    prims = []
    BAR_KS = 13
    for ti, t in enumerate(tiles):
        a = acc[ti & 1]
        with capture() as P:
            for ks in range(16):
                n = ti * 16 + ks
                if ks == BAR_KS and ti + 1 < len(tiles):
                    with atomic():
                        wait(vm='tok%d' % tiles[ti + 1], lgkm='rd%d' % t)
                        barrier()
                lim = n + NR - 2
                if ks < BAR_KS: lim = min(lim, ti * 16 + 15)
                issue_upto(lim)
                for sec in ([0, 1, 2] if t >= 0 else [1, 2]):
                    cc = a[4 * sec:4 * sec + 4]
                    mfma32(cc, W1[(sec * 16 + ks) * 4:(sec * 16 + ks) * 4 + 4], ring[n % NR], 0 if ks == 0 else cc)
                if F:
                    S_, G_ = SG(t)
                    mfma32(S_, ones, ring[n % NR], 0 if ks == 0 else S_)
                    mfma32(G_, ring[n % NR], ring[n % NR], 0 if ks == 0 else G_)
        prims.append(P)

    def k2gemm(buf, a):
        for ks in range(4):
            for ft in range(4):
                mfma32(a[ft], W2[(ks * 4 + ft) * 4:(ks * 4 + ft) * 4 + 4], buf[ks], 0 if ks == 0 else a[ft])
    def o_check(j):
        with atomic():
            sadd(p1, sL4, 4 - j)
            sadd(p0, sOld, j * HT)
            poll_check(vP8, sFO, p1)
    def o_loads(buf):
        for k in range(4): ld4(buf[k], vL16, p0, k * 1024)
    w2items = items(load_frags, [W2[4 * k:4 * k + 4] for k in range(16)], sW2, q3, '~w2')
    def spread(its, a, b):
        n = len(its)
        return [(a + (b - a) * k // max(1, n - 1) if n > 1 else a, it) for k, it in enumerate(its)]

    if F:
        def w3dma(k):
            uu, r = divmod(k, 14); half, t = divmod(r, 7)
            with atomic():
                e('v_accvgpr_read_b32 %s, %s' % (d1, V7A[t]))
                e('s_add_u32 m0, %s, %d' % (q1, LW3 + uu * 57344 + half * 7168 + t * 1024))
                if k == 14: sadd(q0, q0, 256 * 3584)
                e('buffer_load_dwordx4 %s, %s, %s offen lds' % (d1, (SRD_A, SRD_B)[half], q0), '~w3u%d' % uu)
        w3 = [item(w3dma, k) for k in range(28)]
        e('s_mul_i32 %s, %s, 112' % (q1, sMem))
        smad(q0, sW, 64 * 3584, q1)
        e('s_mul_i32 %s, %s, 14336' % (q1, sW))
        def pt1():
            e('s_lshr_b32 %s, %s, 1' % (p0, sMem))
            smad(p1, sGrp, 16, p0)
            smad(p0, p1, HT, HB)
            e('s_and_b32 %s, %s, 1' % (p1, sMem))
            smad(p0, p1, 8192, p0) if False else None
            e('s_lshl_b32 %s, %s, 13' % (p1, p1))
            e('s_add_u32 %s, %s, %s' % (p0, p0, p1))
            smad(p2, sGrp, 32, sMem)
            smad(p1, p2, 8192, X1)
            e('s_cmp_eq_u32 %s, 1' % sW)
            e('s_cselect_b32 %s, %s, %s' % (p0, p1, p0))
            e('v_lshl_add_u32 %s, %s, 7, %s' % (Sx[0], vLane, p0))
            e('s_lshl_b32 %s, %s, 9' % (p2, p2))
            e('v_and_b32 %s, 3, %s' % (Sx[1], vLane))
            e('v_lshl_add_u32 %s, %s, 7, %s' % (Sx[1], Sx[1], p2))
            e('v_bfe_u32 %s, %s, 2, 1' % (Sx[2], vLane))
            e('v_lshl_add_u32 %s, %s, 17, %s' % (Sx[1], Sx[2], Sx[1]))
            e('v_add_u32 %s, 0x%x, %s' % (Sx[1], ST1, Sx[1]))
            e('v_lshl_add_u32 %s, %s, 5, %s' % (Sx[2], vP32, sCS))
            e('v_cmp_lt_u32 vcc, 31, %s' % vLane)
            e('v_cndmask_b32 %s, %s, %s, vcc' % (Sx[1], Sx[1], Sx[2]))
            e('s_cmp_ge_u32 %s, 2' % sW)
            e('s_cselect_b64 vcc, -1, 0')
            e('v_cndmask_b32 %s, %s, %s, vcc' % (Sx[0], Sx[0], Sx[1]))
            e('buffer_load_dword %s, %s, %s, 0 offen' % (vTid, Sx[0], SRD_WS), '~pt')
        NW3 = opt('nw3', 5)
        pl = [[] for _ in range(5)]
        cuts = [0, 6, 12, 17, 22, 26]
        pl[0] = spread(w3[0:6], 2, 72) + [(8, item(pt1))]
        pl[1] = spread(w3[6:12], 6, 76)
        pl[2] = spread(w3[12:17], 8, 72) + [(40, item(poll_issue, vZ, 0, SRD_DBG, 128))]
        pl[3] = [(2, item(lambda: (e('s_movk_i32 %s, 256' % p1), poll_check(vZ, 0, p1, SRD_DBG, 16, 128))))] + spread(w3[17:22], 10, 74) + spread(w2items[0:9], 5, 78)
        pl[4] = spread(w3[22:26], 6, 56) + spread(w2items[9:16], 2, 40)
        w3rest = w3[26:]
    else:
        def chk(t):
            if t >= 0:
                with atomic():
                    e('s_movk_i32 %s, %d' % (p1, 4 - t))
                    sadd(p2, sTokW, t * 32768)
                    poll_check(vP32, sFX, p1)
            else:
                poll_check(vP32, sFlgHalo, sLayer)
        def cs1(sec):
            if sec == 0:
                e('v_lshlrev_b32 %s, 4, %s' % (d3, t1))
                smad(q2, sW, 256, sCS)
            ld4(CS1[4 * sec:4 * sec + 4], d3, q2, 2048 + sec * 64)
        def fetch(t, a):
            its = items(tok_dma, slot[t] * SLOT, p2 if t >= 0 else sTokHaloW, 'tok%d' % t, (d1, d2))
            return [(a, item(chk, t))] + spread(its, a, a + 12) + [(a + 16, item(stat_load, t))]
        pl = [[] for _ in range(5)]
        pl[0] = [(0, item(stat_load, 3)), (1, item(poll_issue, vP32, sFX))] + spread([item(cs1, s) for s in range(3)], 4, 12) + \
                [(16, item(stat_load, 2)), (20, item(publish, 'x2_0', sPub, FK_X * 512, (None, 4)))] + fetch(1, 26)
        pl[1] = [(0, item(poll_issue, vP32, sFX))] + spread(w2items[0:6], 2, 22) + fetch(0, 27)
        pl[2] = [(0, item(poll_issue, vP32, sFlgHalo))] + spread(w2items[6:11], 3, 20) + fetch(-1, 26)
        pl[3] = spread(w2items[11:16], 4, 40)
        pl[4] = []
    secs = [items(consts),
            items(lambda: (gap(8), fin_att(3, acc[0], None))),
            items(lambda: (gap(8), fin_att(2, acc[1], 3))),
            items(lambda: (gap(8), fin_att(1, acc[0], 2))),
            items(lambda: (gap(8), fin_att(0, acc[1], 1)))]
    nm4 = 64 if F else 32
    pl[3].append((24 if F else 14, item(pub_o, 3)))
    pl[4].append((20 if F else 10, item(pub_o, 2)))
    pl[4].append((2, item(poll_issue, vP8, sFO)))
    o3 = [item(o_check, 3)] + items(o_loads, ofA)
    pl[4] += spread(o3, nm4 - 14, nm4 - 2)
    for ti in range(5):
        wv = weave(place(prims[ti], pl[ti]), secs[ti])
        if ti == 4:
            fl = [x for x in flat(wv) if isinstance(x, Inst)]
            lastuse = max(k for k, x in enumerate(fl) if x.is_valu and (x.rd & {('v', r) for g in ofA for r in range(g.idx, g.idx + 4)}))
            firstld = min(k for k, x in enumerate(fl) if x.kind == 'vmem' and (x.wr & {('v', r) for g in ofA for r in range(g.idx, g.idx + 4)}))
            assert lastuse < firstld, (lastuse, firstld)
        put(wv)
        stamp('g%d' % ti)
    poll_issue(vP8, sFO)
    finalize(-1, acc[0])
    att_a(0)
    o_check(2)
    o_loads(ofB)
    finalize_b(-1, acc[0])
    pub_o(1)
    P = items(lambda: (k2gemm(ofA, kaccA), k2gemm(ofB, kaccB)))
    st = items(att_b, 0)
    P = place(P, [(20, item(poll_issue, vP8, sFO)), (26, item(x_write, kaccA, 0))])
    put(weave(P, st, 0, 26))
    stamp('k1')
    x4 = Sx[0:4]; x4b = Sx[4:8]; sq = Pp[0:2]; sqb = Pp[2:4]
    def fin(j, rd_, xx, ss, sreg):
        sadd(sreg, sX1st, (j >> 1) * 32768)
        x_finish(j, rd_, xx, ss, vSX1, SRD_WS, sreg, (1 - (j & 1)) * 1024, sS1st, 'x1_%d' % j, True)
    if F: put(w3rest)
    x_write(kaccB, SLOT)
    pub_o(0)
    o_check(1)
    o_loads(of2A)
    wait(lgkm='all'); barrier()
    x_read(ofA, 0); x_read(ofB, SLOT)
    put(zip2(items(fin, 3, ofA, x4, sq, q2), items(fin, 2, ofB, x4b, sqb, q3)))
    poll_issue(vP8, sFO)
    k2gemm(of2A, kacc2A)
    publish(['x1_2', 'x1_3'], sPub, FK_X1 * 512, (sL4, 2))
    stamp('k2a')
    x_write(kacc2A, 2 * SLOT)
    if F:
        w3prep()
        stamp('prep')
    o_check(0)
    o_loads(of2B)
    R = R3
    e('v_add_u32 %s, %d, %s' % (R.vwb, LW3 + 57344, vL16))
    e('v_and_b32 %s, 15, %s' % (R.t0, vLane))
    e('v_lshrrev_b32 %s, 4, %s' % (R.t1, vLane))
    e('v_lshlrev_b32 %s, 4, %s' % (R.vg16, R.t1))
    e('v_and_b32 %s, 1, %s' % (R.vsc, R.t1))
    e('v_lshlrev_b32 %s, 3, %s' % (R.vsc, R.vsc))
    e('v_lshl_add_u32 %s, %s, 4, %s' % (R.vsc, R.t0, R.vsc))
    e('v_lshrrev_b32 %s, 1, %s' % (R.t1, R.t1))
    e('v_lshl_add_u32 %s, %s, 8, %s' % (R.vsb, R.t1, R.vsc))
    e('v_xor_b32 %s, 1, %s' % (R.t1, R.t1))
    e('v_mul_u32_u24 %s, %d, %s' % (R.t1, HT, R.t1))
    e('v_add_u32 %s, %s, %s' % (R.vsc, R.vsc, R.t1))
    poll_issue(vP32, sFX1)
    wait(lgkm='all'); barrier()
    if F: cs3_reduce()
    x_read(of2A, 2 * SLOT)
    k2gemm(of2B, kacc2B)
    fin(1, of2A, x4, sq, q2)
    x_write(kacc2B, 0)
    with atomic():
        sadd(p1, sL4, 2)
        poll_check(vP32, sFX1, p1)
    wait(vm='cs3')
    stamp('k2b')
    for n in range(2):
        for m in range(2): k3_xload(n, m)
    wait(lgkm='all'); barrier()
    x_read(of2B, 0)
    with capture() as L:
        k3_statload(3, 0); k3_statload(3, 1)
        for n in range(2, R.NX - 1):
            for m in range(2): k3_xload(n, m)
    put(sprinkle(flat(items(fin, 0, of2B, x4b, sqb, q3)), L, 5))

def w3prep():
    q0, q1, q2, q3 = sQ; p2 = sP[2]
    t0, t1, aA, aB, aM, aW, vg = [vr(24 + k, 1) for k in range(7)]
    ones = vr(216); C3 = vr(72, 28); Fr = Reg('a', 200, 56)
    for k in range(4): e('v_mov_b32 %s, 0x3f803f80' % ones[k])
    e('s_lshr_b32 %s, %s, 1' % (q0, sMem))
    smad(q1, sGrp, 16, q0)
    smad(q0, q1, HT, HB + 16384)
    e('s_and_b32 %s, %s, 1' % (q1, sMem))
    smad(q1, q1, 4, sW)
    smad(q0, q1, 5120, q0) if False else None
    e('s_mul_i32 %s, %s, 5120' % (q1, q1))
    e('s_add_u32 %s, %s, %s' % (q0, q0, q1))
    e('v_lshl_add_u32 %s, %s, 7, %s' % (t0, vLane, q0))
    e('s_lshl_b32 %s, %s, 7' % (q1, sC))
    smad(q0, sW, 32768, q1)
    e('s_add_u32 %s, %s, %s' % (q0, q0, sTokBase))
    sadd(q0, q0, X2)
    e('v_and_b32 %s, 15, %s' % (t1, vLane))
    e('v_lshl_add_u32 %s, %s, 11, %s' % (t1, t1, q0))
    e('v_cmp_lt_u32 vcc, 39, %s' % vLane)
    e('v_cndmask_b32 %s, %s, %s, vcc' % (t0, t0, t1))
    pt = item(lambda: e('buffer_load_dword %s, %s, %s, 0 offen' % (vTid, t0, SRD_WS), '~pt'))
    e('v_lshrrev_b32 %s, 4, %s' % (vg, vLane))
    e('v_bfe_u32 %s, %s, 2, 2' % (t1, vLane))
    e('v_lshl_add_u32 %s, %s, 3, %s' % (aM, vg, t1))
    e('v_mul_u32_u24 %s, 112, %s' % (aM, aM))
    e('s_mul_i32 %s, %s, 14336' % (q0, sW))
    e('v_add_u32 %s, %s, %s' % (aM, q0, aM))
    e('v_and_b32 %s, 3, %s' % (t1, vLane))
    e('v_lshl_add_u32 %s, %s, 4, %s' % (aA, t1, aM))
    e('v_lshl_add_u32 %s, %s, 3, %s' % (aB, t1, aM))
    e('v_lshrrev_b32 %s, 1, %s' % (t1, t1))
    e('v_mul_u32_u24 %s, %d, %s' % (t1, 7168 - 16, t1))
    e('v_add_u32 %s, %s, %s' % (aM, aB, t1))
    e('v_add_u32 %s, %s, %s' % (aW, q0, vL16))
    tile_src = [(aA, 0), (aA, 7168), (aA, 8), (aA, 7168 + 8), (aB, 64), (aB, 7168 + 64), (aM, 96)]
    for uu in range(2):
        if uu == 1:
            for r in (aA, aB, aM, aW): e('v_add_u32 %s, 57344, %s' % (r, r))
        wait(vm='~w3u%d' % uu)
        for kk in range(2):
            for tl, (ar, off) in enumerate(tile_src):
                q = (kk * 7 + tl) * 4
                o = kk * 32 * 112 + off
                e('ds_read_b64_tr_b16 %s, %s offset:%d' % (Fr[q:q + 2], ar, o))
                e('ds_read_b64_tr_b16 %s, %s offset:%d' % (Fr[q + 2:q + 4], ar, o + 4 * 112))
        wait(lgkm='all')
        for kk in range(2):
            for tl in range(7):
                q = (kk * 7 + tl) * 4
                e('ds_write_b128 %s, %s offset:%d' % (aW, Fr[q:q + 4], (kk * 7 + tl) * 1024))
                cc = C3[4 * tl:4 * tl + 4]
                mfma32(cc, Fr[q:q + 4], ones, 0 if (uu == 0 and kk == 0) else cc)
    put(pt)
    barrier()
    e('v_lshl_add_u32 %s, %s, 4, %s' % (aW, vg, sM0))
    for tl in range(7):
        e('ds_write_b128 %s, %s offset:%d' % (aW, C3[4 * tl:4 * tl + 4], SLOT + tl * 64))

def cs3_reduce():
    Fv = vr(216, 16); t = vr(232, 1)
    e('v_and_b32 %s, 0x1f0, %s' % (t, vL16))
    e('v_add_u32 %s, %d, %s' % (vr(233, 1), SC + SLOT, t))
    for src in range(4):
        e('ds_read_b128 %s, %s offset:%d' % (Fv[4 * src:4 * src + 4], vr(233, 1), src * 4096))
    for r in range(4):
        e('v_add_f32 %s, %s, %s' % (Fv[r], Fv[r], Fv[4 + r]))
        e('v_add_f32 %s, %s, %s' % (Fv[8 + r], Fv[8 + r], Fv[12 + r]))
        e('v_add_f32 %s, %s, %s' % (Fv[r], Fv[r], Fv[8 + r]))
    smad(sQ[0], sW, 512, sCS)
    e('buffer_store_dwordx4 %s, %s, %s, %s offen' % (Fv[0:4], t, SRD_WS, sQ[0]), 'cs3')

W4A = Reg('a', 192, 64)
W4V = vr(128, 128)
W4REG = [(ks, ft) for ks in range(14) for ft in range(4) if not (ft == 3 and ks < 8)]
def w4frag(ks, ft):
    if ft == 3 and ks < 8: return None
    f = W4REG.index((ks, ft))
    return W4A[4 * f:4 * f + 4] if f < 16 else W4V[4 * (f - 16):4 * (f - 16) + 4]
class R4:
    vl4 = vr(24, 1); d1 = vr(25, 1); d2 = vr(26, 1); sqh = vr(27, 1); sq = vr(28, 2)
    x4 = vr(32); lr = [vr(36), vr(40)]; rd = [vr(44 + 4 * k) for k in range(4)]
    acc = [[vr(60), vr(64), vr(68), vr(108)], [vr(112 + 4 * k) for k in range(4)]]
    NH = 9
    hr = [vr(72 + 4 * k) for k in range(9)]
K4SEQ = [(j, ks) for j in ORDER for ks in range(14)]
def k4_hload(n):
    j, ks = K4SEQ[n]
    with atomic():
        if ks % 4 == 0: sadd(sP[0], sHld, j * HT + ks * 1024)
        ld4(R4.hr[n % R4.NH], vL16, sP[0], (ks % 4) * 1024)

def k3():
    R = R3
    t0, t1, st, nm, KA, KB, tt, hp, accA, accB, wr, xr, NW, NX = R.t0, R.t1, R.st, R.nm, R.KA, R.KB, R.tt, R.hp, R.accA, R.accB, R.wr, R.xr, R.NW, R.NX
    q0, q1, q2, q3 = sQ; p0, p1, p2 = sP
    def w4load(f, optional=False):
        ks, ft = W4REG[f]
        with atomic():
            sadd(q3, sW4, ks * 4096)
            ld4(w4frag(ks, ft), vL16, q3, ft * 1024, '~w4')
    def w4opt(fs):
        l = newlabel('sk')
        with atomic():
            raw('s_cmp_lg_u32 %s, 0' % sLayer)
            raw('s_cbranch_scc1 %s' % l)
            for f in fs:
                ks, ft = W4REG[f]
                raw('s_add_u32 %s, %s, %d' % (q3, sW4, ks * 4096))
                raw('buffer_load_dwordx4 %s, %s, %s, %s offen offset:%d sc1' % (w4frag(ks, ft), vL16, SRD_WS, q3, ft * 1024))
            label(l)
    def w4lds(ks):
        with atomic():
            e('s_add_u32 m0, %s, %d' % (sM0, SLOT * (1 + (ks >> 2)) + (ks & 3) * 1024))
            sadd(q3, sW4, ks * 4096 + 3072)
            e('buffer_load_dwordx4 %s, %s, %s offen sc1 lds' % (vL16, SRD_WS, q3), '~w4l')
    def wread(g):
        idx = g % 112; off = idx * 1024
        if off < 57344: e('ds_read_b128 %s, %s offset:%d' % (wr[g % NW], vL16, off))
        else: e('ds_read_b128 %s, %s offset:%d' % (wr[g % NW], R.vwb, off - 57344))
    K0 = -2.0 * 1.4426950408889634 * 0.7978845608028654
    K1c = K0 * 0.044715
    nmB = [KA[9], KB[9]]
    def stats(K, nm):
        for m in range(2):
            finish_stats(st[4 * m:4 * m + 4], nm[m], K[4 + m], t0)
            e('v_rsq_f32 %s, %s' % (t0, K[4 + m]))
            gap(1)
            e('v_mul_f32 %s, %s, %s' % (K[m], f32(K0), t0))
            e('v_mul_f32 %s, %s, %s' % (t1, t0, t0))
            e('v_mul_f32 %s, %s, %s' % (t1, t1, t0))
            e('v_mul_f32 %s, %s, %s' % (K[2 + m], f32(K1c), t1))
        with atomic():
            e('v_cmp_gt_u32 vcc, 32, %s' % vLane)
            for k in range(3): e('v_cndmask_b32 %s, %s, %s, vcc' % (K[6 + k], K[2 * k + 1], K[2 * k]))
    def gelu4(g4, u4, C0, C1, VV, out2, pk):
        if pk:
            def bc(r): return Reg('v', r.idx & ~1, 2), r.idx & 1
            (c0p, c0s), (c1p, c1s), (vp, vs) = bc(C0), bc(C1), bc(VV)
            for h in (0, 2): e('v_pk_mul_f32 %s, %s, %s' % (tt[h:h + 2], g4[h:h + 2], g4[h:h + 2]))
            for h in (0, 2): e('v_pk_fma_f32 %s, %s, %s, %s op_sel:[0,%d,%d] op_sel_hi:[1,%d,%d]' % (tt[h:h + 2], tt[h:h + 2], c1p, c0p, c1s, c0s, c1s, c0s))
            for h in (0, 2): e('v_pk_mul_f32 %s, %s, %s' % (tt[h:h + 2], tt[h:h + 2], g4[h:h + 2]))
            for r in range(4): e('v_exp_f32 %s, %s' % (tt[r], tt[r]))
            for h in (0, 2): e('v_pk_mul_f32 %s, %s, %s' % (tt[4 + h:6 + h], g4[h:h + 2], u4[h:h + 2]))
            for h in (0, 2): e('v_pk_fma_f32 %s, %s, %s, %s op_sel:[0,%d,%d] op_sel_hi:[1,%d,%d]' % (tt[h:h + 2], tt[h:h + 2], vp, vp, vs, vs, vs, vs))
            for r in range(4): e('v_rcp_f32 %s, %s' % (tt[r], tt[r]))
            for h in (0, 2): e('v_pk_mul_f32 %s, %s, %s' % (tt[h:h + 2], tt[h:h + 2], tt[4 + h:6 + h]))
        else:
            for r in range(4): e('v_mul_f32 %s, %s, %s' % (tt[r], g4[r], g4[r]))
            for r in range(4): e('v_fma_f32 %s, %s, %s, %s' % (tt[r], tt[r], C1, C0))
            for r in range(4): e('v_mul_f32 %s, %s, %s' % (tt[r], tt[r], g4[r]))
            for r in range(4): e('v_exp_f32 %s, %s' % (tt[r], tt[r]))
            for r in range(4): e('v_mul_f32 %s, %s, %s' % (tt[4 + r], g4[r], u4[r]))
            for r in range(4): e('v_fma_f32 %s, %s, %s, %s' % (tt[r], tt[r], VV, VV))
            for r in range(4): e('v_rcp_f32 %s, %s' % (tt[r], tt[r]))
            for r in range(4): e('v_mul_f32 %s, %s, %s' % (tt[r], tt[r], tt[4 + r]))
        cvt(out2[0], tt[0], tt[1]); cvt(out2[1], tt[2], tt[3])
    def epi(ja, a, K, k, pk, freed):
        tag = 'h%d' % k
        Ma = a[24:28]; Mb = a[52:56]
        for r in range(4): e('v_permlane32_swap_b32 %s, %s' % (Ma[r], Mb[r]))
        sadd(q2, sHst, (ja - 1) * HT)
        gelu4(Ma, Mb, K[6], K[7], K[8], hp[0:2], pk)
        e('buffer_store_dwordx2 %s, %s, %s, %s offen offset:1536%s' % (hp[0:2], R.vsc, SRD_WS, q2, SF()), tag)
        freed([6, 13])
        for m in range(2):
            T = lambda tl: a[(m * 7 + tl) * 4:(m * 7 + tl) * 4 + 4]
            sadd(q2, sHst, (ja - m) * HT)
            gelu4(T(0), T(1), K[m], K[2 + m], K[4 + m], st[4:6], pk)
            freed([m * 7, m * 7 + 1])
            gelu4(T(2), T(3), K[m], K[2 + m], K[4 + m], st[6:8], pk)
            e('buffer_store_dwordx4 %s, %s, %s, %s offen%s' % (st[4:8], vL16, SRD_WS, q2, SF()), tag)
            freed([m * 7 + 2, m * 7 + 3])
            gelu4(T(4), T(5), K[m], K[2 + m], K[4 + m], hp[2:4], pk)
            e('buffer_store_dwordx2 %s, %s, %s, %s offen offset:1024%s' % (hp[2:4], R.vsb, SRD_WS, q2, SF()), tag)
            freed([m * 7 + 4, m * 7 + 5])
    for g in range(NW - 2): wread(g)
    prims = []
    FX0 = 5
    for ps in range(2):
        a = (accA, accB)[ps]
        with capture() as P:
            for ks in range(16):
                n = ps * 16 + ks
                if n in (4, 8, 12): stamp('k3a%d' % n)
                for tl in range(7):
                    g = n * 7 + tl
                    if g + NW - 2 < 224: wread(g + NW - 2)
                    for m in range(2):
                        cc = a[(m * 7 + tl) * 4:(m * 7 + tl) * 4 + 4]
                        mfma32(cc, wr[g % NW], xr[n % NX][4 * m:4 * m + 4], 0 if (ks == 0 and ps == 0) else cc)
                        if m == 0 and tl in (0, 4) and n + NX - 1 < 32: k3_xload(n + NX - 1, tl // 4)
                        if ps == 0 and FX0 <= ks < FX0 + 7:
                            ft = ks - FX0
                            ph = ((tl - ft - 3) % 7) * 2 + m
                            if ph < 4:
                                for z in range(2):
                                    mm, r = ph >> 1, (ph & 1) * 2 + z
                                    e('v_fmac_f32 %s, %s, %s' % (accA[(mm * 7 + ft) * 4 + r], accB[ft * 4 + r], nm[mm]))
        prims.append(P)
    def csload(tl):
        if tl == 0: smad(q2, sW, 512, sCS)
        ld4(accB[tl * 4:tl * 4 + 4], R.vg16, q2, tl * 64)
    odd = lambda k: 14 * (k // 2) + (4, 11)[k & 1]
    plA = [(odd(k), item(csload, k)) for k in range(7)]
    plA += [(6, item(publish, ['x1_0', 'x1_1'], sPub, FK_X1 * 512, (sL4, 4)))]
    plA += [(odd(8 + 2 * k), item(w4lds, k)) for k in range(3)]
    plA += [(84, item(poll_issue, vP32, sFX1)), (112, item(lambda: (sadd(p1, sL4, 4), poll_check(vP32, sFX1, p1))))]
    plA += [(odd(16), item(k3_statload, 1, 0)), (odd(17), item(k3_statload, 1, 1))]
    plA += [(odd(20 + 2 * k), item(w4lds, 3 + k)) for k in range(5)]
    plA += [(odd(7 + 2 * k), item(w4opt, [2 * z, 2 * z + 1])) for z, k in enumerate((0, 1, 2, 3, 4, 6, 8, 10))]
    PA = place(prims[0], plA)
    PA = weave(PA, items(stats, KA, nm), 14, 68)
    def scaleB1():
        stats(KB, nmB)
        for z in range(28): e('v_mul_f32 %s, %s, %s' % (accB[28 + z], accB[z], nmB[1]))
    PA = weave(PA, items(scaleB1), 150, 200)
    def scaleB0():
        for z in range(28): e('v_mul_f32 %s, %s, %s' % (accB[z], accB[z], nmB[0]))
    PA = weave(PA, items(scaleB0), 200, 222)
    put(PA)
    stamp('k3a')
    def freedA(tl):
        w4load(16 + tl[0]); pend.append(16 + tl[1])
    pend = []
    with capture() as sB:
        gap(8)
        with capture() as E: epi(3, accA, KA, 1, False, lambda tl: cur().append(('free', tl)))
        cnt = 0; late = []
        for x in E:
            if isinstance(x, tuple):
                w4load(16 + x[1][0]); late = [16 + x[1][1]]; cnt = 0
                continue
            cur().append(x); cnt += 1
            if late and cnt == 18:
                w4load(late.pop())
        for f in late: w4load(f)
    PB = weave(prims[1], sB, 0, 206)
    plB = [(220, item(publish, 'h1', sPubH, 0, (sL2, 1))), (214, item(poll_issue, vP8, sFH))]
    put(placeB(PB, plB, w4load))
    stamp('k3b')
    with capture() as E: epi(1, accB, KB, 2, True, lambda tl: cur().append(('free', tl)))
    rest = [item(w4load, f) for f in list(range(30, 38)) + XLATE]
    hq = []; out = []; clock = 0; nh = 0; freed = set()
    out.append(item(lambda: (sadd(p1, sL2, 1), poll_check(vP8, sFH, p1))))
    nxt = 0
    for x in E:
        if isinstance(x, tuple):
            freed |= set(x[1]); continue
        out.append(x); clock += weight(x)
        if clock >= nxt:
            if nh < R4.NH - 1 and nh in freed:
                out.append(item(k4_hload, nh)); nh += 1; nxt = clock + 12
            elif rest:
                out.append(rest.pop(0)); nxt = clock + 12
    put(out)
    for n in range(nh, R4.NH - 1): k4_hload(n)
    put(rest)

XLATE = []
def placeB(PB, pl, w4load):
    del XLATE[:]
    for n in range(27, 32):
        s = n % 5
        pos = (n - 16) * 14 + 14
        fs = [38 + 2 * s, 39 + 2 * s]
        if pos + 8 < 224:
            pl.append((pos + 1, item(w4load, fs[0]))); pl.append((pos + 8, item(w4load, fs[1])))
        else:
            XLATE.extend(fs)
    return place(PB, pl)

def k4():
    R = R4
    vl4, rd, x4, sq, sqh, acc, lr, hr, NH = R.vl4, R.rd, R.x4, R.sq, R.sqh, R.acc, R.lr, R.hr, R.NH
    q0, q1, q2, q3 = sQ; p0, p1, p2 = sP
    def lread(ks):
        e('ds_read_b128 %s, %s offset:%d' % (lr[ks & 1], vl4, SLOT * (1 + (ks >> 2)) + (ks & 3) * 1024), 'lr')
    e('v_add_u32 %s, %s, %s' % (vl4, sM0, vL16))
    wait(vm='~w4l')
    lread(0)
    stamp('k4h')
    prims = []
    for ti, j in enumerate(ORDER):
        a = acc[ti & 1]
        with capture() as P:
            for ks in range(14):
                n = ti * 14 + ks
                for ft in range(4):
                    w = w4frag(ks, ft) or lr[ks & 1]
                    mfma32(a[ft], w, hr[n % NH], 0 if ks == 0 else a[ft])
                    if ft == 0:
                        m = n + NH - 1
                        if m == 28:
                            sadd(p1, sL2, 2)
                            poll_check(vP8, sFH, p1)
                        if m < 56: k4_hload(m)
                        if m == 21: poll_issue(vP8, sFH)
                    if ft == 1:
                        if ks + 1 < 8: lread(ks + 1)
                        if ks == 12 and ti < 3: lread(0)
        prims.append(P)
    def fin(j, a, pk):
        x_write(a, 0)
        gap(10)
        with atomic():
            wait(lgkm='xw'); barrier()
        x_read(rd, 0)
        sadd(q2, sTokBase, j * 32768)
        gap(14)
        x_finish(j, rd, x4, sq, vSX2, SRD_DST, q2, 0, sStatBase, 'x2_%d' % j, pk)
        if j == 3: e('v_mov_b32 %s, %s' % (sqh, sq[0]))
    def pub(j): publish('x2_%d' % j, sPub, FK_X * 512, (None, 4 - j))
    put(place(prims[0], [(12, item(publish, 'h2', sPubH, 0, (sL2, 2))), (40, item(barrier))]))
    for ti in (1, 2, 3):
        stamp('k4t%d' % ti)
        with capture() as s:
            gap(8)
            fin(ORDER[ti - 1], acc[(ti - 1) & 1], False)
            barrier()
        pl = []
        if ti >= 2: pl.append((14, item(pub, ORDER[ti - 2])))
        if ti == 3:
            def pre():
                srd(SRD_TOK, P_WS, 0x240000, add=X2)
                sadd(q1, sTokW, 3 * 32768)
                poll_check(vP32, sFX, sNX)
                wait(lgkm='lr')
            def halo():
                smad(q0, sGrp, 32768, X2 + XH_REL)
                smad(p2, sGrp, 1024, STH)
                smad(q3, sLayer, 4, sRb)
                e('s_cmp_eq_u32 %s, 3' % q3)
                e('s_cselect_b32 %s, %s, 0x%x' % (q0, q0, OOB))
                e('s_cselect_b32 %s, %s, 0x%x' % (p2, p2, OOB))
                e('s_cselect_b32 %s, %s, 0x%x' % (q3, sPub, OOB))
                e('buffer_store_dwordx2 %s, %s, %s, %s offen sc1' % (RES[6:8], vSX2, SRD_WS, q0), 'halo')
                e('buffer_store_dword %s, %s, %s, %s offen sc1' % (sqh, vSS, SRD_WS, p2), 'halo')
            pl += [(6, item(poll_issue, vP32, sFX)), (26, item(halo)), (30, item(pre))]
            its = items(tok_dma, SLOT, q1, 'tok3', (R.d1, R.d2))
            pl += [(31 + 4 * k, it) for k, it in enumerate(its)]
            pl += [(48, item(poll_issue, vP32, sFX))]
        put(weave(place(prims[ti], pl), s, 0, 50))
    stamp('k4m')
    x_write(acc[1], 0)
    pub(1)
    e('s_lshl_b32 %s, %s, 1' % (p1, sNX))
    sadd(q1, sTokW, 2 * 32768)
    wait(lgkm='xw'); barrier()
    x_read(rd, 0)
    poll_check(vP32, sFX, p1)
    its = items(tok_dma, 2 * SLOT, q1, 'tok2', (R.d1, R.d2))
    put(sprinkle(flat(items(x_finish, 0, rd, x4, sq, vSX2, SRD_DST, sTokBase, 0, sStatBase, 'x2_0', True)), its, 8))
    publish('halo', q3, FK_HALO * 512, (None, 1), sc1=True)

def next_layer():
    a, b, c = sP
    e('s_cmp_eq_u32 %s, 1' % sLayer)
    e('s_cbranch_scc1 .Ldone')
    e('s_mov_b32 %s, 1' % sLayer)
    e('s_mov_b32 %s, 4' % sL4)
    e('s_mov_b32 %s, 2' % sL2)
    e('s_mov_b32 %s, 0' % sNX)
    srd(SRD_DST, P_OUT, 0x200000)
    smad(a, sGrp, 32768, XH_REL - 32768)
    smad(b, sW, 8192, a)
    e('s_cmp_eq_u32 %s, 0' % sRb)
    e('s_cselect_b32 %s, %s, %s' % (sTokHaloW, b, sTokHaloW))
    e('s_cmp_eq_u32 %s, 1' % sFirst)
    e('s_cselect_b32 %s, %s, %s' % (sTokHaloW, sTokW, sTokHaloW))

def body(sfx):
    k12(True); stamp('k2')
    label('.Lloop' + sfx, 'mark:h' + sfx)
    e('s_nop 1')
    k3(); stamp('k3')
    k4(); stamp('k4')
    next_layer()
    k12(False); stamp('k2')
    label('.Lback' + sfx, 'same:h' + sfx)
    e('s_branch .Lloop' + sfx)

def emit(stream):
    st = insert_nops(insert_waits2(flat(stream), opt('ldsage', 28), opt('vmage', 260)))
    return [i.text if i.kind == 'label' else '    ' + i.text for i in st]

def build():
    with capture() as A:
        prologue()
        body('')
        label('.Ldone', 'reset')
        if STAMPS:
            rstamp(31)
            smad(sQ[0], Reg('s', 2), 4, sW)
            smad(sQ[0], sQ[0], 256, STAMP)
            e('v_lshlrev_b32 %s, 2, %s' % (vPoll, vLane))
            e('buffer_store_dword %s, %s, %s, %s offen' % (vStampV, vPoll, SRD_WS, sQ[0]))
        label('.Lend')
        e('s_endpgm')
    lines = emit(A)
    lines += [c if c.endswith(':') else '    ' + c for c in COLD]
    lines.append('.Lfast_end:')
    del COLD[:]
    SLOW[0] = True
    with capture() as B:
        label('.Lslow', 'reset')
        raw('s_waitcnt vmcnt(0) lgkmcnt(0)')
        body('_s')
    lines += emit(B)
    lines += [c if c.endswith(':') else '    ' + c for c in COLD]
    lines.append('    s_endpgm')
    hdr = open('interleave_layers__sliding_local_dilated__geglu_ffn__prompt.s.ref').read().splitlines()
    out = [l for l in hdr if l.startswith(';') and '@launch' not in l and 'Override launch' not in l and 'grid=ceil' not in l]
    out.append('; @launch grid=(256,1,1) block=(256,1,1) lds=%d' % LDS_TOTAL)
    out += ['.amdgcn_target "amdgcn-amd-amdhsa--gfx950"', '.text', '.globl %s' % KNAME, '.p2align 8', '.type %s,@function' % KNAME, KNAME + ':']
    out += lines
    out += ['.section .rodata,"a"', '.p2align 6', '.amdhsa_kernel %s' % KNAME,
            '  .amdhsa_next_free_vgpr 512', '  .amdhsa_next_free_sgpr 102', '  .amdhsa_accum_offset 256',
            '  .amdhsa_group_segment_fixed_size 0', '  .amdhsa_kernarg_size 80', '  .amdhsa_user_sgpr_count 2',
            '  .amdhsa_user_sgpr_kernarg_segment_ptr 1', '  .amdhsa_system_sgpr_workgroup_id_x 1', '.end_amdhsa_kernel']
    return '\n'.join(out) + '\n'

if __name__ == '__main__':
    assert all((i * 9363) >> 16 == i // 7 for i in range(448))
    txt = build()
    dst = [a for a in sys.argv[1:] if not a.startswith('--')]
    open(dst[0] if dst else 'interleave_layers__sliding_local_dilated__geglu_ffn__prompt.s', 'w').write(txt)
    if STAMPS:
        open((dst[0] if dst else 'x') + '.names', 'w').write('\n'.join(STAMP_NAMES))
    L = txt.splitlines()
    a = L.index('.Lloop:'); b = L.index('.Ldone:')
    bodyl = [l.split()[0] for l in L[a:b] if l.startswith('    ')]
    from collections import Counter
    cnt = Counter('mfma' if m.startswith('v_mfma') else 'wait' if m == 's_waitcnt' else 'nop' if m == 's_nop' else 'salu' if m.startswith('s_') else 'ds' if m.startswith('ds_') else 'vmem' if m.startswith('buffer') else 'trans' if m in TRANS else 'valu' for m in bodyl)
    print('total instr', sum(1 for l in L if l.startswith('    ')), 'bytes', len(txt), 'loop', len(bodyl), dict(cnt))
```
